```python
import torch

def _softmax(x, axis=-1):
    return torch.softmax(x, dim=axis)
def _gelu(x):
    return torch.nn.functional.gelu(x, approximate="tanh")
def _silu(x):
    return torch.nn.functional.silu(x)
def _sigmoid(x):
    return torch.sigmoid(x)
def _layernorm(x, axis=-1, eps=1e-5):
    m = x.mean(dim=axis, keepdim=True)
    v = x.var(dim=axis, keepdim=True, unbiased=False)
    return (x - m) / torch.sqrt(v + eps)
def _scatter_add(tgt, idx, src, axis=0):
    return tgt.clone().index_add_(axis, idx, src)
def _segment_sum(src, seg, n):
    out = torch.zeros((n,) + src.shape[1:], dtype=src.dtype)
    return out.index_add_(0, seg, src)
def _pad(x, pw):
    flat = tuple(v for pair in reversed(pw) for v in pair)
    return torch.nn.functional.pad(x, flat)

kernel_name = 'interleave_layers__spectral_gfnet__glu_gated_reglu__prompt'

def setup_inputs():

    _w = (lambda a: (lambda t: t.to(torch.bfloat16) if t.is_floating_point() else t)(torch.as_tensor(a)))
    def _A_setup():
        B, S, D = 1, 2048, 512
        Df = D // 2 + 1
        return {
            "x": _w((lambda *s: torch.randn(*s, dtype=torch.bfloat16) * 0.05)(B, S, D)),
            "w_r": _w((lambda *s: torch.randn(*s, dtype=torch.bfloat16) * 0.4)(S, Df) * 0.02),
            "w_i": _w((lambda *s: torch.randn(*s, dtype=torch.bfloat16) * 0.4)(S, Df) * 0.02),
        }
    _A_in = _A_setup()

    def _B_setup():
        B, S, D, F = 1, 2048, 512, 1792
        return {
            "x": _w((lambda *s: torch.randn(*s, dtype=torch.bfloat16) * 0.05)(B, S, D)),
            "W_gate": _w((lambda *s: torch.randn(*s, dtype=torch.bfloat16) * 0.2)(D, F) * (2.0 / D) ** 0.5),
            "W_up": _w((lambda *s: torch.randn(*s, dtype=torch.bfloat16) * 0.2)(D, F) * (2.0 / D) ** 0.5),
            "W_down": _w((lambda *s: torch.randn(*s, dtype=torch.bfloat16) * 0.2)(F, D) * (1.0 / F) ** 0.5),
        }
    _B_in = _B_setup()

    return {
        "A_x": _A_in["x"],
        "A_w_r": _A_in["w_r"],
        "A_w_i": _A_in["w_i"],
        "B_x": _B_in["x"],
        "B_W_gate": _B_in["W_gate"],
        "B_W_up": _B_in["W_up"],
        "B_W_down": _B_in["W_down"],
    }

def reference(A_x, A_w_r, A_w_i, B_x, B_W_gate, B_W_up, B_W_down):
    def _A_ref(x, w_r, w_i):
        B, S, D = x.shape
        X = (lambda x, axes=(-2,-1): torch.fft.rfft2(x.float(), dim=axes))(x, axes=(-2, -1))
        W = w_r + 1j * w_i
        X = X * W
        y = (lambda x, s, axes=(-2,-1): torch.fft.irfft2(x, s=s, dim=axes).to(torch.bfloat16))(X, (S, D), axes=(-2, -1))
        return y

    def _B_ref(x, W_gate, W_up, W_down):
        gate = torch.einsum("bsd,df->bsf", x, W_gate)
        up = torch.einsum("bsd,df->bsf", x, W_up)
        gate = gate * (lambda x, dt: x.to(dt))(gate > 0, gate.dtype)
        h = gate * up
        return torch.einsum("bsf,fd->bsd", h, W_down)

    x = A_x
    x = x + _A_ref(_layernorm(x, axis=-1), A_w_r, A_w_i)
    x = x + _B_ref(_layernorm(x, axis=-1), B_W_gate, B_W_up, B_W_down)
    x = x + _A_ref(_layernorm(x, axis=-1), A_w_r, A_w_i)
    x = x + _B_ref(_layernorm(x, axis=-1), B_W_gate, B_W_up, B_W_down)
    return x
```

```python
import re, struct

def f2u(x):
    return struct.unpack("<I", struct.pack("<f", x))[0]
def flit(x):
    return "0x%08x" % f2u(x)

_REG = re.compile(r"^(-?\|?)?(?:abs\()?([vas])(?:(\d+)|\[(\d+):(\d+)\])\)?\|?$")
TRANS = ("v_exp_f32","v_log_f32","v_rcp_f32","v_rsq_f32","v_sqrt_f32","v_sin_f32","v_cos_f32","v_rcp_iflag_f32")

def regs_of(tok):
    tok = tok.strip()
    if tok in ("vcc",): return {("s",106),("s",107)}
    if tok == "vcc_lo": return {("s",106)}
    if tok == "vcc_hi": return {("s",107)}
    if tok == "exec": return {("s",126),("s",127)}
    if tok == "m0": return {("s",124)}
    m = _REG.match(tok)
    if not m: return set()
    f = m.group(2)
    if m.group(3) is not None:
        return {(f, int(m.group(3)))}
    return {(f, i) for i in range(int(m.group(4)), int(m.group(5))+1)}

def split_ops(rest):
    ops, mods, depth, cur = [], [], 0, ""
    for ch in rest + ",":
        if ch in "[(": depth += 1
        elif ch in "])": depth -= 1
        if ch == "," and depth == 0:
            parts = cur.split()
            if parts:
                ops.append(parts[0]); mods += parts[1:]
            cur = ""
        else: cur += ch
    return ops, mods

class Ins:
    __slots__ = ("text","mn","ops","mods","kind","wr","rd","passes","srcc","srcab","ws","dpp","data")
    def __init__(self, text):
        self.text = text
        t = text.split(";")[0].strip()
        sp = t.split(None, 1)
        self.mn = mn = sp[0]
        ops, mods = split_ops(sp[1]) if len(sp) > 1 else ([], [])
        self.ops, self.mods = ops, mods
        self.wr, self.rd = set(), set()
        self.passes = 0; self.srcc = set(); self.srcab = set(); self.ws = 1; self.dpp = False; self.data = set()
        R = [regs_of(o) for o in ops]
        allr = set().union(*R) if R else set()
        if mn.startswith("v_mfma"):
            self.kind = "mfma"
            self.wr = R[0]; self.srcab = R[1] | R[2]; self.srcc = R[3]; self.rd = self.srcab | self.srcc
            if "32x32x16" in mn: self.passes = 8
            elif "16x16x32" in mn: self.passes = 4
            else: raise ValueError("mfma? " + mn)
        elif mn.startswith("v_"):
            self.kind = "valu"
            if "_dpp" in mn or any(m.startswith(("row_","quad_perm","wave_")) for m in mods): self.dpp = True
            if mn.startswith("v_permlane") and "swap" in mn:
                self.wr = R[0] | R[1]; self.rd = R[0] | R[1]
            elif mn.startswith(("v_add_co","v_sub_co","v_subrev_co","v_addc_co","v_subb_co","v_mad_u64","v_div_scale")):
                self.wr = R[0] | R[1]; self.rd = set().union(*R[2:])
            elif mn.startswith("v_nop"):
                pass
            else:
                self.wr = R[0]; self.rd = set().union(*R[1:]) if len(R) > 1 else set()
                if mn.startswith(("v_fmac","v_dot2c","v_pk_fmac","v_mac","v_writelane")) or self.dpp or "sdwa" in mn:
                    self.rd |= R[0]
                if mn.startswith("v_cndmask") and len(ops) == 3: self.rd |= regs_of("vcc")
        elif mn.startswith(("buffer_","global_")):
            self.kind = "vmem"
            if "lds" in mods or "_lds_" in mn:
                self.rd = allr | {("s",124)}
            elif "load" in mn:
                self.wr = R[0]; self.rd = set().union(*R[1:])
                if "d16" in mn: self.rd |= R[0]
            elif mn.startswith(("buffer_wbl2","buffer_inv")):
                pass
            else:
                self.rd = allr
                if "store" in mn and ("x4" in mn or "x3" in mn):
                    self.data = R[0] if mn.startswith("buffer_") else R[1]
                if "atomic" in mn and "sc0" in mods:
                    self.wr = R[0]
        elif mn.startswith("ds_"):
            self.kind = "ds"
            if mn.startswith(("ds_read","ds_bpermute","ds_permute","ds_swizzle")) or "_rtn" in mn:
                self.wr = R[0]; self.rd = set().union(*R[1:])
            else:
                self.rd = allr
        elif mn.startswith("s_"):
            self.kind = "salu"
            if mn == "s_nop":
                self.ws = int(ops[0], 0) + 1
            elif mn.startswith(("s_cmp","s_waitcnt","s_barrier","s_branch","s_cbranch","s_endpgm","s_setprio","s_sleep","s_bitcmp")):
                self.rd = allr
            elif mn.startswith(("s_load","s_buffer_load","s_memtime","s_memrealtime")):
                self.kind = "smem"; self.wr = R[0]; self.rd = set().union(*R[1:]) if len(R) > 1 else set()
            else:
                self.wr = R[0]; self.rd = set().union(*R[1:]) if len(R) > 1 else set()
                if "saveexec" in mn: self.wr |= regs_of("exec"); self.rd |= regs_of("exec")
        else:
            raise ValueError("unknown instr: " + text)

def need(p, c):
    n = 0
    vec = lambda s: {r for r in s if r[0] in "va"}
    sc = lambda s: {r for r in s if r[0] == "s"}
    if p.kind == "mfma":
        big = {4: 8, 8: 12}[p.passes]
        if c.kind == "mfma":
            if p.wr & c.srcab: n = max(n, big)
            if p.wr & c.srcc:
                if not (p.wr == c.srcc and p.passes == c.passes): n = max(n, big - 2)
            elif p.wr & c.wr: n = max(n, big)
        elif c.kind in ("valu","vmem","ds"):
            if p.wr & (c.rd | c.wr): n = max(n, big)
            if c.kind == "valu" and (p.srcc & c.wr): n = max(n, {4: 3, 8: 7}[p.passes])
            if c.kind in ("vmem","ds") and (p.srcc & c.wr): n = max(n, {4: 3, 8: 7}[p.passes])
    elif p.kind == "valu":
        pv, ps = vec(p.wr), sc(p.wr)
        if c.kind == "mfma":
            if pv & c.rd: n = max(n, 2)
            if ps & regs_of("exec"): n = max(n, 4)
        if p.mn.startswith(TRANS) and c.kind in ("valu","vmem","ds") and (pv & c.rd): n = max(n, 1)
        if p.mn.startswith("v_dot"):
            if c.kind in ("valu","vmem","ds","mfma") and (pv & (c.rd | c.wr)):
                same = c.mn == p.mn
                if same and not (pv & set().union(*[regs_of(o) for o in c.ops[1:3]])): pass
                else: n = max(n, 3)
        if ("sdwa" in p.mn or any(m.startswith("op_sel") for m in p.mods)) and not p.mn.startswith("v_pk_") and c.kind == "valu" and (pv & (c.rd|c.wr)):
            n = max(n, 1)
        if c.kind == "valu":
            if ps & c.rd:
                n = max(n, 4 if c.mn.startswith(("v_readlane","v_writelane","v_div_fmas")) else 2)
            if pv & c.rd:
                if c.mn.startswith(("v_readlane","v_readfirstlane")): n = max(n, 1)
                if c.dpp or c.mn.startswith("v_permlane"): n = max(n, 2)
            if (ps & regs_of("exec")) and (c.dpp): n = max(n, 5)
        if c.kind == "vmem" and (ps & c.rd): n = max(n, 5)
        if c.kind in ("salu","smem") and (ps & c.rd): n = max(n, 2)
    elif p.kind == "salu":
        if (("s",124) in p.wr) and c.kind in ("vmem","ds") and (("s",124) in c.rd): n = max(n, 1)
    elif p.kind == "vmem":
        if p.data and (p.data & c.wr): n = max(n, 2 if c.kind in ("valu","mfma") else 1)
    return n

MAXW = 14

class Asm:
    def __init__(self):
        self.items = []
    def __call__(self, text):
        for line in text.strip().split("\n"):
            line = line.strip()
            if not line or line.startswith(";"): continue
            if line.split(";")[0].strip().endswith(":"):
                self.items.append(("l", line.split(":")[0].strip()))
            else:
                self.items.append(("i", Ins(line)))
    def raw(self, text): self.items.append(("r", text))
    def label(self, name): self.items.append(("l", name))
    def resolve(self):
        incoming = {}
        for it in range(6):
            out = []; hist = []
            newinc = {}
            changed = False
            dead = False
            for kind, x in self.items:
                if kind == "r":
                    out.append((kind, x)); hist = []; continue
                if kind == "l":
                    inc = incoming.get(x, [])
                    merged = {} if dead else {id(p): [d, p] for d, p in hist}
                    for d, p in inc:
                        if id(p) in merged: merged[id(p)][0] = min(merged[id(p)][0], d)
                        else: merged[id(p)] = [d, p]
                    hist = [list(v) for v in merged.values()]
                    dead = False
                    out.append((kind, x)); continue
                c = x
                req = 0
                for d, p in hist:
                    n = need(p, c)
                    if n > d: req = max(req, n - d)
                if req:
                    changed = True
                    nop = Ins("s_nop %d" % (req - 1))
                    out.append(("i", nop))
                    hist = [[d + req, p] for d, p in hist if d + req < MAXW]
                out.append(("i", c))
                hist = [[d + c.ws, p] for d, p in hist if d + c.ws < MAXW]
                if c.kind in ("mfma","valu","vmem") or (c.kind == "salu" and ("s",124) in c.wr):
                    hist.append([0, c])
                if c.mn.startswith(("s_branch","s_cbranch")):
                    newinc.setdefault(c.ops[0], []).extend([list(h) for h in hist])
                if c.mn in ("s_branch","s_endpgm"): dead = True; hist = []
            self.items = out
            same = {k: sorted((d, id(p)) for d, p in v) for k, v in newinc.items()} == {k: sorted((d, id(p)) for d, p in v) for k, v in incoming.items()}
            incoming = newinc
            if not changed and same: break
        else:
            raise RuntimeError("hazard pass did not converge")
    def text(self):
        self.resolve()
        o = []
        for kind, x in self.items:
            if kind == "i": o.append("    " + x.text)
            elif kind == "l": o.append(x + ":")
            else: o.append(x)
        return "\n".join(o) + "\n"

def v(i, n=1): return f"v{i}" if n == 1 else f"v[{i}:{i+n-1}]"
def a(i, n=1): return f"a{i}" if n == 1 else f"a[{i}:{i+n-1}]"
def s(i, n=1): return f"s{i}" if n == 1 else f"s[{i}:{i+n-1}]"
```

```python
from asmlib import *
HDR = '.amdgcn_target "amdgcn-amd-amdhsa--gfx950"\n.text\n'
def kd(name, vgpr, sgpr=102, accum=None):
    if accum is None: accum = (vgpr + 3)//4*4
    return f""".p2align 6
.amdhsa_kernel {name}
  .amdhsa_next_free_vgpr {vgpr}
  .amdhsa_next_free_sgpr {sgpr}
  .amdhsa_accum_offset {accum}
  .amdhsa_group_segment_fixed_size 0
  .amdhsa_kernarg_size 80
  .amdhsa_user_sgpr_count 2
  .amdhsa_user_sgpr_kernarg_segment_ptr 1
  .amdhsa_system_sgpr_workgroup_id_x 1
  .amdhsa_float_denorm_mode_32 3
.end_amdhsa_kernel
"""
def entry(A, name):
    A.raw(f".globl {name}\n.p2align 8\n.type {name},@function\n{name}:")
def srd(A, d, base, off, size):
    if off:
        A(f"s_add_u32 s{d}, s{base}, 0x{off:x}")
        A(f"s_addc_u32 s{d+1}, s{base+1}, 0")
    else:
        A(f"s_mov_b32 s{d}, s{base}")
        A(f"s_mov_b32 s{d+1}, s{base+1}")
    A(f"s_mov_b32 s{d+2}, 0x{size:x}")
    A(f"s_mov_b32 s{d+3}, 0x20000")

import os
TRACE = int(os.environ.get("TRACE", "0"))
TRBASE = 40 << 20
class Tr:
    n = 0
def stamp(A, i, wait=True):
    if not TRACE: return
    A(f"{'s_memtime' if os.environ.get('CYC') else 's_memrealtime'} s[{70+2*i}:{71+2*i}]")
    if wait: A("s_waitcnt lgkmcnt(0)")
def stamp_cyc(A, i):
    if not TRACE: return
    A(f"s_memtime s[{70+2*i}:{71+2*i}]")
    A("s_waitcnt lgkmcnt(0)")
def trace_out(A, kid_sgpr_or_const, n, ws=14, wave=3):
    if not TRACE: return
    A("s_waitcnt vmcnt(0) lgkmcnt(0)")
    A(f"s_memrealtime s[{70+2*n}:{71+2*n}]")
    A("s_getreg_b32 s69, hwreg(HW_REG_XCC_ID)")
    A("s_waitcnt lgkmcnt(0)")
    A(f"s_add_u32 s64, s{ws}, 0x{TRBASE:x}"); A(f"s_addc_u32 s65, s{ws+1}, 0"); A("s_mov_b32 s66, 0x1000000"); A("s_mov_b32 s67, 0x20000")
    A("s_lshl_b32 s68, s2, 2")
    A(f"s_add_u32 s68, s68, s{wave}")
    A("s_lshl_b32 s68, s68, 6")
    if isinstance(kid_sgpr_or_const, int):
        A(f"s_add_u32 s68, s68, 0x{kid_sgpr_or_const*0x20000:x}")
    else:
        A(f"s_lshl_b32 s63, {kid_sgpr_or_const}, 17")
        A("s_add_u32 s68, s68, s63")
    A("v_mov_b32 v0, 0")
    for i in range(n+1):
        A(f"v_mov_b32 v1, s{70+2*i}")
        A(f"buffer_store_dword v1, v0, s[64:67], s68 offen offset:{4*i}")
    A("v_mov_b32 v1, s69")
    A(f"buffer_store_dword v1, v0, s[64:67], s68 offen offset:60")
```

```python
import numpy as np
S, D, F = 2048, 512, 1792
MB = 1 << 20
XH0 = 0*MB; A1 = 2*MB; D1 = 4*MB; D2 = 6*MB; D3 = 8*MB; WT = 10*MB
W1P = 12*MB; WDP = 16*MB; WD0 = 18*MB; H = 20*MB; X3D = 28*MB
SS0 = 32*MB; SS1 = SS0 + 8192; SS2 = SS0 + 2*8192; SS3 = SS0 + 3*8192
SYNC = 33*MB
A3 = 34*MB; H2 = 48*MB
WS_SZ = 64*MB
SZ_X = 2*MB; SZ_W1P = 4*MB; SZ_WD = 8*112*2*1024; SZ_H = 32*112*2*1024; SZ_X3D = 2*MB
def perm(m):
    return (m & ~12) | ((m & 4) << 1) | ((m & 8) >> 1)
def sig2s(sg):
    return (sg & 0x780) | ((sg & 3) << 5) | ((sg & 4) << 2) | ((sg >> 3) & 15)
```

```python
import sys
from common import *
from layout import *

MF16 = "v_mfma_f32_16x16x32_bf16"
MF32 = "v_mfma_f32_32x32x16_bf16"
KN = "interleave_layers__spectral_gfnet__glu_gated_reglu__prompt_kernel"
WS = "s[24:27]"; SX = "s[28:31]"; R2 = "s[32:35]"; R3 = "s[36:39]"; R4 = "s[40:43]"; R5 = "s[44:47]"; DBG = "s[48:51]"
LDS_FFT = 131072
LDS_TOTAL = 131072 + 16384
SPIN = 400000
LD = "sc1"
ST = "sc1"

class Q:
    def __init__(self, A, name, mx): self.A = A; self.q = []; self.name = name; self.mx = mx
    def issue(self, text, tag): self.A(text); self.q.append(tag)
    def wtext(self, tags):
        if not isinstance(tags, (list, set)): tags = [tags]
        idx = max([i for i, t in enumerate(self.q) if t in tags], default=-1)
        if idx < 0: return None
        n = len(self.q) - 1 - idx
        self.q = self.q[idx+1:]
        return f"s_waitcnt {self.name}({min(n, self.mx)})"
    def wait(self, tags):
        t = self.wtext(tags)
        if t: self.A(t)
    def drain(self):
        self.A(f"s_waitcnt {self.name}(0)"); self.q = []

A = Asm()
vm = Q(A, "vmcnt", 63)
lg = Q(A, "lgkmcnt", 15)
_lab = [0]
def newlab(p):
    _lab[0] += 1
    return f"L{p}{_lab[0]}"

def pack(dst, src, n):
    for k in range(n//2): A(f"v_cvt_pk_bf16_f32 v{dst+k}, v{src+2*k}, v{src+2*k+1}")
def unpack(dst, src, n):
    for k in range(n//2):
        A(f"v_lshlrev_b32 v{dst+2*k}, 16, v{src+k}")
        A(f"v_and_b32 v{dst+2*k+1}, 0xffff0000, v{src+k}")
def cmul(dr, di, ar, ai, br, bi, t, conj=False, lo=0, hi=8):
    for k in range(lo, hi, 2):
        A(f"v_pk_mul_f32 {v(t,2)}, {v(ai+k,2)}, {v(bi+k,2)}")
        A(f"v_pk_mul_f32 {v(t+2,2)}, {v(ar+k,2)}, {v(bi+k,2)}")
        ng = " neg_lo:[0,0,1] neg_hi:[0,0,1]"
        A(f"v_pk_fma_f32 {v(dr+k,2)}, {v(ar+k,2)}, {v(br+k,2)}, {v(t,2)}{'' if conj else ng}")
        A(f"v_pk_fma_f32 {v(di+k,2)}, {v(ai+k,2)}, {v(br+k,2)}, {v(t+2,2)}{ng if conj else ''}")

class Rec:
    def __init__(self): self.l = []
    def __call__(self, text): self.l.append(lambda t=text: A(t))
    def vm(self, text, tag): self.l.append(lambda: vm.issue(text, tag))
    def lg(self, text, tag): self.l.append(lambda: lg.issue(text, tag))
    def vmwait(self, tags): self.l.append(lambda: vm.wait(tags))
    def lgwait(self, tags): self.l.append(lambda: lg.wait(tags))

def sync_off(b): return SYNC + b*0x8000
def arrive_global(b):
    vm.drain()
    A("s_barrier")
    l = newlab("ar")
    A("s_cmp_lg_u32 s3, 0")
    A(f"s_cbranch_scc1 {l}")
    A("v_mov_b32 v6, 0"); A("v_mov_b32 v7, 1")
    A("s_mov_b64 exec, 1")
    if b == 1:
        A("s_and_b32 s56, s2, 3"); A("s_lshl_b32 s56, s56, 6")
        A(f"buffer_atomic_add v7, v6, {DBG}, s56 offen sc1")
    else:
        A("s_and_b32 s56, s2, 15"); A("s_lshl_b32 s56, s56, 8"); A(f"s_add_u32 s56, s56, 0x{sync_off(b):x}")
        A(f"buffer_atomic_add v7, v6, {WS}, s56 offen sc1")
    A("s_mov_b64 exec, -1")
    A.label(l)
def poll(srd, voff, soff, nl, target, sleep=1):
    p = newlab("pl"); x = newlab("px")
    A(f"s_mov_b64 exec, 0x{(1<<nl)-1:x}")
    A("s_mov_b32 s57, 0")
    A.label(p)
    A(f"buffer_load_dword v7, {voff}, {srd}, {soff} offen sc1")
    A("s_waitcnt vmcnt(0)")
    A(f"v_cmp_gt_u32 vcc, {target}, v7")
    A(f"s_cbranch_vccz {x}")
    if sleep: A(f"s_sleep {sleep}")
    A("s_add_u32 s57, s57, 1")
    A(f"s_cmp_lt_u32 s57, {SPIN}")
    A(f"s_cbranch_scc1 {p}")
    A.label(x)
def wait_global(b):
    l = newlab("wt"); nm = newlab("nm"); dn = newlab("dn")
    A("s_cmp_lg_u32 s3, 0")
    A(f"s_cbranch_scc1 {l}")
    A("s_cmp_lg_u32 s2, 255")
    A(f"s_cbranch_scc1 {nm}")
    if b == 1:
        A("v_lshlrev_b32 v6, 6, v1")
        poll(DBG, "v6", "0", 4, 64, 0)
        A("s_mov_b64 exec, 1")
        A("v_mov_b32 v6, 32"); A("v_mov_b32 v7, 1")
        A(f"buffer_store_dword v7, v6, {DBG}, 0 offen sc1")
    else:
        A("v_lshlrev_b32 v6, 8, v1")
        A(f"s_mov_b32 s56, 0x{sync_off(b):x}")
        poll(WS, "v6", "s56", 16, 16, 0)
        A("s_mov_b64 exec, 0xff")
        A("v_mov_b32 v7, 1")
        A(f"s_mov_b32 s56, 0x{sync_off(b)+0x4000:x}")
        A(f"buffer_store_dword v7, v6, {WS}, s56 offen sc1")
    A(f"s_branch {dn}")
    A.label(nm)
    if b == 1:
        A("v_mov_b32 v6, 32")
        poll(DBG, "v6", "0", 1, 1)
    else:
        A("v_mov_b32 v6, 0")
        A("s_and_b32 s56, s2, 7"); A("s_lshl_b32 s56, s56, 8"); A(f"s_add_u32 s56, s56, 0x{sync_off(b)+0x4000:x}")
        poll(WS, "v6", "s56", 1, 1)
    A.label(dn)
    A("s_mov_b64 exec, -1")
    A.label(l)
    A("s_barrier")
def arrive_local(b, ysg):
    vm.drain()
    A("s_barrier")
    l = newlab("ar")
    A("s_cmp_lg_u32 s3, 0")
    A(f"s_cbranch_scc1 {l}")
    A("v_mov_b32 v6, 0"); A("v_mov_b32 v7, 1")
    A("s_mov_b64 exec, 1")
    A(f"s_lshl_b32 s56, {ysg}, 8"); A(f"s_add_u32 s56, s56, 0x{sync_off(b):x}")
    A(f"buffer_atomic_add v7, v6, {WS}, s56 offen sc1")
    A("s_mov_b64 exec, -1")
    A.label(l)
def wait_local(b, ysg, target):
    l = newlab("wt")
    A("s_cmp_lg_u32 s3, 0")
    A(f"s_cbranch_scc1 {l}")
    A("v_mov_b32 v6, 0")
    A(f"s_lshl_b32 s56, {ysg}, 8"); A(f"s_add_u32 s56, s56, 0x{sync_off(b):x}")
    poll(WS, "v6", "s56", 1, target)
    A("s_mov_b64 exec, -1")
    A.label(l)
    A("s_barrier")

def interleave(mf, fill, start=0, per=None):
    n = len(mf); k = 0
    for i, m in enumerate(mf):
        m()
        if i >= start:
            tgt = (i - start + 1)*len(fill)//(n - start) if per is None else min(len(fill), (i-start+1)*per)
            while k < tgt: fill[k](); k += 1
    while k < len(fill): fill[k](); k += 1

PH = 128
def p1():
    XA, XC, XB = 0, 32768, 65536
    DFR = 64
    AC = 192
    A("s_and_b32 s58, s2, 7"); A("s_lshr_b32 s59, s2, 5"); A("s_lshl_b32 s59, s59, 3"); A("s_add_u32 s58, s58, s59")
    A("s_lshr_b32 s59, s2, 3"); A("s_and_b32 s59, s59, 3")
    A("s_lshl_b32 s60, s59, 2"); A("s_add_u32 s60, s60, s3")
    A("s_and_b32 s61, s3, 1")
    A("s_lshr_b32 s62, s3, 1")
    A("s_lshl_b32 s56, s61, 7")
    A("v_xor_b32 v8, s56, v2")
    A("s_lshr_b32 s56, s58, 2"); A("s_lshl_b32 s56, s56, 7")
    A("s_and_b32 s57, s58, 3"); A("s_lshl_b32 s57, s57, 2"); A("s_add_u32 s56, s56, s57")
    A("s_lshl_b32 s57, s61, 4"); A("s_add_u32 s56, s56, s57")
    A("s_lshl_b32 s57, s62, 1"); A("s_add_u32 s56, s56, s57")
    A("s_lshl_b32 s56, s56, 10")
    A("s_lshl_b32 s63, s3, 13")
    A("s_waitcnt lgkmcnt(0)")
    srd(A, 28, 4, 0, 2*MB)
    for i in range(8):
        A(f"v_xor_b32 v9, {i<<4}, v8")
        A(f"s_add_u32 m0, s63, {XA+i*1024}")
        A(f"s_add_u32 s57, s56, {((i&3)*32+(i>>2))*1024}")
        vm.issue(f"buffer_load_dwordx4 v9, {SX}, s57 offen lds", "xa")
    srd(A, 24, 22, 0, WS_SZ)
    srd(A, 48, 20, 0, 256)
    srd(A, 32, 6, 0, 2048*257*2)
    srd(A, 36, 8, 0, 2048*257*2)
    A("s_lshl_b32 s64, s2, 2"); A("s_add_u32 s64, s64, s3")
    A("s_lshl_b32 s65, s64, 1")
    A("s_and_b32 s56, s65, 0x780")
    A("s_and_b32 s57, s65, 3"); A("s_lshl_b32 s57, s57, 5"); A("s_or_b32 s56, s56, s57")
    A("s_and_b32 s57, s65, 4"); A("s_lshl_b32 s57, s57, 2"); A("s_or_b32 s56, s56, s57")
    A("s_lshr_b32 s57, s65, 3"); A("s_and_b32 s57, s57, 15"); A("s_or_b32 s56, s56, s57")
    A("s_lshl_b32 s56, s56, 10")
    A("s_add_u32 s57, s56, 32768")
    vm.issue(f"buffer_load_dwordx4 v[16:19], v2, {SX}, s56 offen", "rs")
    vm.issue(f"buffer_load_dwordx4 v[20:23], v2, {SX}, s57 offen", "rs")
    A("s_and_b32 s56, s65, 3"); A("s_lshl_b32 s56, s56, 6")
    A("v_add_u32 v10, s56, v1")
    A("v_mov_b32 v11, 256")
    A("v_cmp_eq_u32 vcc, 0, v10")
    A("v_cndmask_b32 v11, v10, v11, vcc")
    A("v_lshlrev_b32 v11, 1, v11")
    A("v_lshlrev_b32 v12, 1, v10")
    A("s_lshr_b32 s66, s65, 2"); A("s_and_b32 s66, s66, 63")
    A("s_lshr_b32 s67, s65, 8")
    A("s_lshl_b32 s56, s67, 8"); A("s_add_u32 s56, s56, s66"); A("s_mul_i32 s56, s56, 514")
    for e in range(4):
        vm.issue(f"buffer_load_ushort v{24+e}, v11, {R2}, s56 offen", "wt")
        vm.issue(f"buffer_load_ushort v{28+e}, v11, {R3}, s56 offen", "wt")
        vm.issue(f"buffer_load_ushort v{32+e}, v12, {R2}, s56 offen offset:128", "wt")
        vm.issue(f"buffer_load_ushort v{36+e}, v12, {R3}, s56 offen offset:128", "wt")
        if e < 3: A(f"s_add_u32 s56, s56, {64*514}")
    lz = newlab("z")
    A("s_cmp_lt_u32 s2, 224")
    A(f"s_cbranch_scc1 {lz}")
    A("s_sub_u32 s56, s64, 896")
    A("v_mov_b32 v40, 0\nv_mov_b32 v41, 0\nv_mov_b32 v42, 0\nv_mov_b32 v43, 0")
    A("s_cmp_ge_u32 s56, 24")
    lz2 = newlab("z")
    A(f"s_cbranch_scc1 {lz2}")
    A("s_lshl_b32 s57, s56, 10"); A(f"s_add_u32 s57, s57, 0x{SS1:x}")
    A(f"buffer_store_dwordx4 v[40:43], v2, {WS}, s57 offen sc1")
    A(f"s_branch {lz}")
    A.label(lz2)
    A("s_cmp_ge_u32 s56, 40")
    A(f"s_cbranch_scc1 {lz}")
    A("s_sub_u32 s57, s56, 24"); A("s_lshl_b32 s57, s57, 14"); A(f"s_add_u32 s57, s57, 0x{SYNC:x}")
    A("v_lshlrev_b32 v44, 8, v1")
    A(f"buffer_store_dword v40, v44, {WS}, s57 offen sc1")
    A.label(lz)
    A("s_lshl_b32 s56, s60, 5")
    A("v_add_u32 v40, s56, v5")
    A("v_lshrrev_b32 v41, 1, v40")
    A("v_and_b32 v42, 1, v40")
    A("v_cvt_f32_u32 v43, v41")
    A(f"v_mul_f32 v43, {flit(1/512)}, v43")
    A("v_cvt_f32_u32 v44, v42")
    A(f"v_mul_f32 v44, {flit(0.25)}, v44")
    A(f"v_mov_b32 v45, {flit(0.125)}")
    A("v_cmp_eq_u32 vcc, 0, v41")
    A("v_cndmask_b32 v44, v44, v45, vcc")
    A("v_mov_b32 v45, 0.5")
    A("v_cmp_eq_u32 vcc, 0, v40")
    A("v_cndmask_b32 v43, v43, v45, vcc")
    A("v_lshlrev_b32 v45, 31, v41")
    A("v_or_b32 v14, 1.0, v45")
    A("v_lshlrev_b32 v45, 3, v4")
    A("v_cvt_f32_u32 v45, v45")
    A("v_fma_f32 v44, v43, v45, v44")
    A(f"v_mul_f32 v46, {flit(16.0)}, v43")
    A("v_cos_f32 v46, v46")
    C = [96, 104, 112]
    for kk in range(2):
        for t in range(8):
            A(f"v_fmamk_f32 v{C[kk]+t}, v43, {flit(16*kk+t)}, v44")
    A("v_add_f32 v46, v46, v46")
    for kk in range(2):
        for t in range(8):
            A(f"v_cos_f32 v{C[kk]+t}, v{C[kk]+t}")
    A(f"s_mov_b32 s56, {flit(1/16)}")
    for kk in range(2):
        for t in range(0, 8, 2):
            A(f"v_pk_mul_f32 {v(C[kk]+t,2)}, {v(C[kk]+t,2)}, s[56:57] op_sel_hi:[1,0]")
    pack(PH, C[0], 8); pack(PH+4, C[1], 8)
    for ks in range(2, 16):
        p, c, n = C[(ks-2)%3], C[(ks-1)%3], C[ks%3]
        for t in range(0, 8, 2):
            A(f"v_pk_fma_f32 {v(n+t,2)}, {v(c+t,2)}, v[46:47], {v(p+t,2)} op_sel_hi:[1,0,1] neg_lo:[0,0,1] neg_hi:[0,0,1]")
        pack(PH+4*ks, n, 8)
    A("s_cmp_lt_u32 s58, 56")
    A(f"s_cselect_b32 s42, {F*D*2}, 0")
    A(f"s_cselect_b32 s46, {F*D*2}, 0")
    A("s_cmp_ge_u32 s58, 28")
    A("s_cselect_b32 s40, s14, s12"); A("s_cselect_b32 s41, s15, s13"); A("s_mov_b32 s43, 0x20000")
    A("s_cselect_b32 s68, 1, 0")
    A("s_mul_i32 s56, s68, 28"); A("s_sub_u32 s69, s58, s56")
    A("s_mov_b32 s44, s16"); A("s_mov_b32 s45, s17"); A("s_mov_b32 s47, 0x20000")
    A("v_lshrrev_b32 v40, 3, v1")
    A("v_mul_u32_u24 v40, 3584, v40")
    A("v_and_b32 v41, 7, v1")
    A("v_lshrrev_b32 v42, 2, v1")
    A("v_and_b32 v42, 4, v42")
    A("v_xor_b32 v41, v41, v42")
    A("v_lshl_add_u32 v40, v41, 4, v40")
    A(f"s_mul_i32 s56, s3, {128*3584}"); A("s_lshl_b32 s57, s69, 7"); A("s_add_u32 s56, s56, s57")
    A("s_lshl_b32 s54, s3, 14")
    for i in range(16):
        A(f"s_add_u32 m0, s54, {XB+i*1024}")
        A(f"s_add_u32 s57, s56, {i*8*3584}")
        vm.issue(f"buffer_load_dwordx4 v40, {R4}, s57 offen lds", "xb")
    A("s_lshl_b32 s56, s58, 5"); A("s_lshl_b32 s57, s62, 4"); A("s_add_u32 s56, s56, s57")
    A("s_lshl_b32 s57, s61, 2"); A("s_add_u32 s56, s56, s57"); A("s_lshl_b32 s56, s56, 10")
    for i in range(8):
        A(f"v_xor_b32 v9, {i<<4}, v8")
        A(f"s_add_u32 m0, s63, {XC+i*1024}")
        A(f"s_add_u32 s57, s56, {((i>>2)*8+(i&3))*1024}")
        vm.issue(f"buffer_load_dwordx4 v9, {R5}, s57 offen lds", "xc")
    A("v_and_b32 v40, 15, v3"); A("v_xor_b32 v40, v40, v4"); A("v_lshlrev_b32 v40, 4, v40")
    A("v_lshl_add_u32 v48, v3, 10, v40")
    for q in range(1, 8): A(f"v_xor_b32 v{48+q}, {q<<5}, v48")
    stamp(A, 1)
    vm.wait("wt")
    A("s_barrier")
    stamp(A, 2)
    R = Rec()
    for e in range(4):
        R(f"v_lshl_or_b32 v{24+e}, v{28+e}, 16, v{24+e}")
        R(f"v_lshl_or_b32 v{32+e}, v{36+e}, 16, v{32+e}")
    R("s_lshr_b32 s56, s66, 4"); R("s_lshl_b32 s56, s56, 11"); R("s_lshl_b32 s57, s67, 8"); R("s_add_u32 s56, s56, s57")
    R("s_and_b32 s57, s66, 15"); R("s_lshl_b32 s57, s57, 4"); R("s_add_u32 s56, s56, s57"); R(f"s_add_u32 s56, s56, 0x{WT:x}")
    R(f"s_add_u32 s57, s56, {64*8192}")
    R("v_lshlrev_b32 v10, 13, v10")
    R.vm(f"buffer_store_dwordx4 v[24:27], v10, {WS}, s56 offen {ST}", "st")
    R.vm(f"buffer_store_dwordx4 v[32:35], v10, {WS}, s57 offen {ST}", "st")
    for k in range(4):
        R(f"v_lshlrev_b32 v{96+4*k}, 16, v{16+k}"); R(f"v_lshlrev_b32 v{97+4*k}, 16, v{20+k}")
        R(f"v_and_b32 v{98+4*k}, 0xffff0000, v{16+k}"); R(f"v_and_b32 v{99+4*k}, 0xffff0000, v{20+k}")
    R("v_pk_add_f32 v[112:113], v[96:97], v[98:99]")
    for k in range(2, 8): R(f"v_pk_add_f32 v[112:113], v[112:113], {v(96+2*k,2)}")
    def wsum2(r, t):
        for sh in (8, 4, 2, 1):
            R(f"v_add_f32_dpp v{r}, v{r}, v{r} row_ror:{sh} row_mask:0xf bank_mask:0xf")
            R(f"v_add_f32_dpp v{r+1}, v{r+1}, v{r+1} row_ror:{sh} row_mask:0xf bank_mask:0xf")
        for op in ("v_permlane16_swap_b32", "v_permlane32_swap_b32"):
            R(f"v_mov_b32 v{t}, v{r}"); R(f"v_mov_b32 v{t+1}, v{r+1}")
            R(f"{op} v{r}, v{t}"); R(f"{op} v{r+1}, v{t+1}")
            R(f"v_pk_add_f32 {v(r,2)}, {v(r,2)}, {v(t,2)}")
    wsum2(112, 114)
    R(f"s_mov_b32 s56, {flit(-1/512)}")
    R("v_pk_mul_f32 v[112:113], v[112:113], s[56:57] op_sel_hi:[1,0]")
    for k in range(8): R(f"v_pk_add_f32 {v(96+2*k,2)}, {v(96+2*k,2)}, v[112:113]")
    R("v_pk_mul_f32 v[116:117], v[96:97], v[96:97]")
    for k in range(1, 8): R(f"v_pk_fma_f32 v[116:117], {v(96+2*k,2)}, {v(96+2*k,2)}, v[116:117]")
    wsum2(116, 114)
    R("s_lshl_b32 s56, s65, 2"); R(f"s_add_u32 s56, s56, 0x{SS0:x}")
    R("v_mov_b32 v118, 0")
    R("s_mov_b64 exec, 1")
    R.vm(f"buffer_store_dwordx2 v[116:117], v118, {WS}, s56 offen {ST}", "st")
    R("s_mov_b64 exec, -1")
    tail = R.l[-3:]; R.l = R.l[:-3]
    def rowgemm(base, fill):
        order = [k for i in range(16) for k in (i, i+16)]
        def rd(n):
            ks = order[n]
            lg.issue(f"ds_read_b128 {v(DFR+(n%8)*4,4)}, v{48+ks%8} offset:{base+(ks//8)*256}", n)
        for n in range(7): rd(n)
        mf = []
        for n, ks in enumerate(order):
            def m(n=n, ks=ks):
                if n + 7 < 32: rd(n+7)
                lg.wait(n)
                acc = v(AC+16*(ks//16), 16)
                A(f"{MF32} {acc}, {v(DFR+(n%8)*4,4)}, {v(PH+4*(ks%16),4)}, {acc if n >= 2 else 0}")
            mf.append(m)
        interleave(mf, fill)
        for k in range(0, 16, 2):
            A(f"v_pk_fma_f32 {v(AC+k,2)}, {v(AC+16+k,2)}, v[14:15], {v(AC+k,2)} op_sel_hi:[1,0,1]")
        pack(56, AC, 16)
    rowgemm(XA, R.l)
    for f in tail: f()
    A("s_lshl_b32 s56, s60, 17"); A("s_lshl_b32 s57, s58, 6"); A("s_add_u32 s56, s56, s57")
    if XH0: A(f"s_add_u32 s56, s56, 0x{XH0:x}")
    A("v_lshlrev_b32 v40, 12, v5"); A("v_lshl_add_u32 v40, v4, 4, v40")
    vm.issue(f"buffer_store_dwordx4 v[56:59], v40, {WS}, s56 offen {ST}", "st")
    vm.issue(f"buffer_store_dwordx4 v[60:63], v40, {WS}, s56 offen offset:32 {ST}", "st")
    stamp(A, 3)
    arrive_global(1)
    stamp(A, 4)
    lph = newlab("ph"); ldone = newlab("p1d")
    A("s_cmp_ge_u32 s58, 56")
    A(f"s_cbranch_scc1 {lph}")
    A("v_lshrrev_b32 v42, 2, v1"); A("v_and_b32 v42, 3, v42")
    A("v_lshl_add_u32 v43, v4, 3, v42"); A("v_lshlrev_b32 v43, 7, v43")
    A("v_and_b32 v44, 16, v1"); A("v_lshl_or_b32 v43, v44, 1, v43")
    A("v_and_b32 v44, 1, v1"); A("v_lshl_or_b32 v43, v44, 4, v43")
    A("v_and_b32 v44, 2, v1"); A("v_lshl_or_b32 v43, v44, 2, v43")
    A("v_lshrrev_b32 v44, 1, v42"); A("v_lshl_or_b32 v43, v44, 6, v43")
    A(f"v_add_u32 v40, {XB}, v43"); A("v_xor_b32 v41, 64, v40")
    order = [(k, dt) for i in range(16) for k in (i, i+16) for dt in range(2)]
    def rdb(n):
        ks, dt = order[n]
        for T in range(2):
            lg.issue(f"ds_read_b64_tr_b16 {v(DFR+(n%8)*4+2*T,2)}, v{40+dt} offset:{(16*ks+4*T)*128}", n)
    for n in range(6): rdb(n)
    for n, (ks, dt) in enumerate(order):
        if n + 6 < 64: rdb(n+6)
        lg.wait(n)
        acc = v(AC+32*dt+16*(ks//16), 16)
        A(f"{MF32} {acc}, {v(PH+4*(ks%16),4)}, {v(DFR+(n%8)*4,4)}, {acc if n >= 4 else 0}")
    A("s_lshl_b32 s56, s69, 17"); A("s_lshl_b32 s57, s60, 12"); A("s_add_u32 s56, s56, s57")
    A("s_lshl_b32 s57, s68, 10"); A("s_add_u32 s56, s56, s57"); A(f"s_add_u32 s56, s56, 0x{W1P:x}")
    A("s_add_u32 s57, s56, 65536")
    for dt in range(2):
        for k in range(0, 16, 2):
            ng = " neg_lo:[0,1] neg_hi:[0,1]" if (k & 2) else ""
            A(f"v_pk_add_f32 {v(AC+32*dt+k,2)}, {v(AC+32*dt+k,2)}, {v(AC+32*dt+16+k,2)}{ng}")
        pack(96+8*dt, AC+32*dt, 16)
        vm.issue(f"buffer_store_dwordx4 {v(96+8*dt,4)}, v2, {WS}, s{56+dt} offen {ST}", "st")
        vm.issue(f"buffer_store_dwordx4 {v(100+8*dt,4)}, v2, {WS}, s{56+dt} offen offset:2048 {ST}", "st")
    A("v_lshl_add_u32 v43, v4, 2, v42")
    A("v_lshrrev_b32 v44, 3, v1"); A("v_and_b32 v44, 2, v44")
    A("v_and_b32 v45, 1, v1"); A("v_or_b32 v44, v44, v45")
    A("s_lshl_b32 s56, s60, 2"); A("v_or_b32 v44, s56, v44")
    A("v_xor_b32 v44, v44, v43"); A("v_lshlrev_b32 v44, 4, v44")
    A("v_lshl_add_u32 v44, v43, 10, v44")
    A("v_and_b32 v45, 2, v1"); A("v_lshl_or_b32 v44, v45, 2, v44")
    A("v_xor_b32 v45, 128, v44")
    for kk in range(2):
        lg.issue(f"ds_read_b64_tr_b16 {v(112+4*kk,2)}, v44 offset:{XC+kk*16384}", "wd0")
        lg.issue(f"ds_read_b64_tr_b16 {v(114+4*kk,2)}, v45 offset:{XC+kk*16384+8192}", "wd0")
    A("s_lshr_b32 s56, s60, 1"); A(f"s_mul_i32 s56, s56, {112*2048}")
    A("s_lshl_b32 s57, s58, 12"); A("s_add_u32 s56, s56, s57")
    A("s_lshl_b32 s57, s61, 10"); A("s_add_u32 s56, s56, s57")
    A(f"s_add_u32 s57, s56, 0x{WD0:x}"); A(f"s_add_u32 s56, s56, 0x{WDP:x}")
    lg.wait("wd0")
    vm.issue(f"buffer_store_dwordx4 v[112:115], v2, {WS}, s57 offen {ST}", "st")
    vm.issue(f"buffer_store_dwordx4 v[116:119], v2, {WS}, s57 offen offset:2048 {ST}", "st")
    rowgemm(XC, [])
    vm.issue(f"buffer_store_dwordx4 v[56:59], v2, {WS}, s56 offen {ST}", "st")
    vm.issue(f"buffer_store_dwordx4 v[60:63], v2, {WS}, s56 offen offset:2048 {ST}", "st")
    A(f"s_branch {ldone}")
    A.label(lph)
    A("s_sub_u32 s56, s64, 896")
    A("s_lshr_b32 s57, s56, 4"); A("s_lshl_b32 s57, s57, 6")
    A("v_add_u32 v40, s57, v5"); A("v_cvt_f32_u32 v40, v40")
    A("s_and_b32 s57, s56, 15"); A("s_lshl_b32 s57, s57, 4")
    A("v_lshl_add_u32 v41, v4, 2, s57")
    A("v_cmp_eq_u32 vcc, 0, v41")
    A("v_cvt_f32_u32 v41, v41")
    A("s_lshl_b32 s56, s56, 12"); A(f"s_add_u32 s56, s56, 0x{W1P+56*65536:x}")
    for aa in range(2):
        for mt in range(2):
            A(f"v_add_f32 v42, {flit(32.0*mt)}, v40")
            A(f"v_mul_f32 v43, {flit(1/512)}, v42")
            A("v_mul_f32 v44, v43, v41")
            for q in range(4):
                A(f"v_fmamk_f32 v{96+2*q}, v43, {flit(8*aa+q)}, v44")
                A(f"v_add_f32 v{97+2*q}, {flit(0.25)}, v{96+2*q}")
            if aa == 0:
                A(f"v_mov_b32 v45, {flit(0.125)}")
                A("v_fma_f32 v46, v42, 0.5, v45")
                A("v_cndmask_b32 v96, v96, v46, vcc")
                A("v_cndmask_b32 v97, v97, v45, vcc")
            for t in range(8): A(f"v_fract_f32 v{96+t}, v{96+t}")
            for t in range(8): A(f"v_cos_f32 v{96+t}, v{96+t}")
            for t in range(8): A(f"v_mul_f32 v{96+t}, {flit(1/16)}, v{96+t}")
            d = 104 + 4*(aa*2+mt)
            pack(d, 96, 8)
            A(f"buffer_store_dwordx4 {v(d,4)}, v2, {WS}, s56 offen offset:{(aa*2+mt)*1024} {ST}")
    A.label(ldone)
    vm.q = ["st"]*8

XR, XI, WTV, DR, DI, SSV = 64, 68, 72, 80, 84, 88
XFR, XFI, DFR_, DFI_ = 96, 104, 112, 120
FR, FI, NFI, GR, GI, NGI, TWR, TWI = 128, 136, 144, 152, 160, 168, 176, 184
Z = 192; RE, IM, T = 224, 232, 240; WR, WI, BR, BI = 16, 24, 32, 36
def fft_tables():
    A("v_and_b32 v8, 15, v1")
    A("v_lshrrev_b32 v9, 4, v1")
    A("s_lshl_b32 s56, s3, 4")
    A("v_add_u32 v40, s56, v8"); A("v_cvt_f32_u32 v40, v40")
    A("v_lshlrev_b32 v41, 2, v9"); A("v_cvt_f32_u32 v41, v41")
    def sincos(dc, ds, dns, consts):
        for t in range(8): A(f"v_fmamk_f32 v{T+t}, v42, {flit(consts[t])}, v43")
        for t in range(8): A(f"v_cos_f32 v{RE+t}, v{T+t}")
        for t in range(8): A(f"v_sin_f32 v{IM+t}, v{T+t}")
        pack(dc, RE, 8); pack(dns, IM, 8)
        for k in range(4): A(f"v_xor_b32 v{ds+k}, 0x80008000, v{dns+k}")
    A(f"v_mul_f32 v42, {flit(1/64)}, v40"); A("v_mul_f32 v43, v42, v41")
    for q in range(2): sincos(FR+4*q, FI+4*q, NFI+4*q, [32*q + 16*(t//4) + t%4 for t in range(8)])
    for dt in range(2):
        A(f"v_add_u32 v42, {16*dt}, v8"); A("v_cvt_f32_u32 v42, v42")
        A(f"v_mul_f32 v42, {flit(1/32)}, v42"); A("v_mul_f32 v43, v42, v41")
        sincos(GR+4*dt, GI+4*dt, NGI+4*dt, [16*(t//4) + t%4 for t in range(8)])
    A(f"v_mul_f32 v42, {flit(-1/2048)}, v40"); A("v_mul_f32 v43, v42, v41")
    for t in range(8): A(f"v_fmamk_f32 v{T+t}, v42, {flit(16*(t//4)+t%4)}, v43")
    for t in range(8):
        A(f"v_cos_f32 v{TWR+t}, v{T+t}"); A(f"v_sin_f32 v{TWI+t}, v{T+t}")
    A("s_lshr_b32 s56, s3, 1"); A("s_lshl_b32 s56, s56, 10"); A("s_and_b32 s57, s3, 1"); A("s_lshl_b32 s57, s57, 3")
    A("s_add_u32 s56, s56, s57"); A(f"s_add_u32 s56, s56, {LDS_FFT}")
    A("v_add_u32 v10, s56, v2")
    A("s_lshl_b32 s56, s3, 11"); A(f"s_add_u32 s56, s56, {LDS_FFT+8192}")
    A("v_lshlrev_b32 v11, 5, v8"); A("v_lshl_add_u32 v11, v9, 3, v11"); A("v_add_u32 v11, s56, v11")
    A("v_lshlrev_b32 v12, 3, v1"); A(f"v_add_u32 v12, {LDS_FFT+8192}, v12")
    A(f"v_add_u32 v13, {LDS_FFT}, v2")
    A("v_lshlrev_b32 v15, 5, v1")
    A("s_lshl_b32 s58, s2, 13"); A("s_lshl_b32 s59, s3, 10"); A("s_add_u32 s58, s58, s59"); A("s_lshl_b32 s59, s3, 11")
def fft_static_loads(R=None):
    E = R if R else A
    iss = (R.vm if R else vm.issue)
    E("s_lshl_b32 s60, s2, 13"); E("s_lshl_b32 s61, s3, 10"); E("s_add_u32 s60, s60, s61"); E("s_add_u32 s61, s61, s60")
    E(f"s_add_u32 s61, s61, 0x{WT:x}")
    if XH0: E(f"s_add_u32 s60, s60, 0x{XH0:x}")
    iss(f"buffer_load_dwordx4 {v(XR,4)}, v2, {WS}, s60 offen {LD}", "fx")
    E("s_add_u32 s60, s60, 4096")
    iss(f"buffer_load_dwordx4 {v(XI,4)}, v2, {WS}, s60 offen {LD}", "fx")
    iss(f"buffer_load_dwordx4 {v(WTV,4)}, v2, {WS}, s61 offen {LD}", "fw")
    iss(f"buffer_load_dwordx4 {v(WTV+4,4)}, v2, {WS}, s61 offen offset:1024 {LD}", "fw")
def fft(L, after_loads=None):
    ss, dprev, dout, aout = [(SS0, None, D1, A1), (SS2, D2, D3, A3)][L]
    A(f"s_add_u32 s56, s59, 0x{ss:x}")
    vm.issue(f"buffer_load_dwordx4 {v(SSV,4)}, v15, {WS}, s56 offen {LD}", "fx")
    vm.issue(f"buffer_load_dwordx4 {v(SSV+4,4)}, v15, {WS}, s56 offen offset:16 {LD}", "fx")
    if L == 0: fft_static_loads()
    else:
        A(f"s_add_u32 s56, s58, 0x{dprev:x}"); A("s_add_u32 s57, s56, 4096")
        vm.issue(f"buffer_load_dwordx4 {v(DR,4)}, v2, {WS}, s56 offen {LD}", "fx")
        vm.issue(f"buffer_load_dwordx4 {v(DI,4)}, v2, {WS}, s57 offen {LD}", "fx")
    if after_loads: after_loads()
    if L:
        unpack(XFR, XR, 8); unpack(XFI, XI, 8)
        for k in range(8):
            A(f"v_lshlrev_b32 v{WR+k}, 16, v{WTV+k}"); A(f"v_and_b32 v{WI+k}, 0xffff0000, v{WTV+k}")
    A(f"s_mov_b32 s56, {flit(2048.0*2048.0/512)}")
    A(f"v_mov_b32 v{T}, {flit(1e-5*2048.0*2048.0)}")
    vm.wait("fx")
    stamp(A, 6+L*6)
    for k in range(8): A(f"v_fma_f32 v{SSV+k}, v{SSV+k}, s56, v{T}")
    for k in range(8): A(f"v_rsq_f32 v{SSV+k}, v{SSV+k}")
    if L == 0:
        unpack(XFR, XR, 8); unpack(XFI, XI, 8)
    else:
        unpack(DFR_, DR, 8); unpack(DFI_, DI, 8)
        for k in range(0, 8, 2):
            A(f"v_pk_add_f32 {v(XFR+k,2)}, {v(XFR+k,2)}, {v(DFR_+k,2)}")
            A(f"v_pk_add_f32 {v(XFI+k,2)}, {v(XFI+k,2)}, {v(DFI_+k,2)}")
    l = newlab("np")
    A("s_cmp_lg_u32 s2, 0"); A(f"s_cbranch_scc1 {l}")
    for k in range(8): A(f"v_mov_b32 v{XFI+k}, 0")
    A.label(l)
    for k in range(0, 8, 2):
        A(f"v_pk_mul_f32 {v(RE+k,2)}, {v(XFR+k,2)}, {v(SSV+k,2)}")
        A(f"v_pk_mul_f32 {v(IM+k,2)}, {v(XFI+k,2)}, {v(SSV+k,2)}")
    pack(BR, RE, 8); pack(BI, IM, 8)
    for part, src in enumerate((BR, BI)):
        for t in range(2): A(f"ds_write_b64 v10, {v(src+2*t,2)} offset:{(part*2+t)*2048}")
    A("s_waitcnt lgkmcnt(0)")
    A("s_barrier")
    zf = lambda part, t, q: Z + ((part*2+t)*2+q)*4
    for t in range(2):
        for q in range(2):
            for part in range(2):
                A(f"ds_read_b128 {v(zf(part,t,q),4)}, v13 offset:{((part*2+t)*2+q)*1024}")
    if L == 0:
        vm.wait("fw")
        for k in range(8):
            A(f"v_lshlrev_b32 v{WR+k}, 16, v{WTV+k}"); A(f"v_and_b32 v{WI+k}, 0xffff0000, v{WTV+k}")
    for t in range(2):
        for q in range(2):
            A(f"s_waitcnt lgkmcnt({6-(t*2+q)*2})")
            re, im = v(RE+4*t,4), v(IM+4*t,4)
            A(f"{MF16} {re}, {v(zf(0,t,q),4)}, {v(FR+4*q,4)}, {re if q else 0}")
            A(f"{MF16} {im}, {v(zf(0,t,q),4)}, {v(FI+4*q,4)}, {im if q else 0}")
            A(f"{MF16} {re}, {v(zf(1,t,q),4)}, {v(NFI+4*q,4)}, {re}")
            A(f"{MF16} {im}, {v(zf(1,t,q),4)}, {v(FR+4*q,4)}, {im}")
    cmul(RE, IM, RE, IM, TWR, TWI, T)
    pack(BR, RE, 8); pack(BI, IM, 8)
    for dt in range(2):
        re, im = v(RE+4*dt,4), v(IM+4*dt,4)
        A(f"{MF16} {re}, {v(GR+4*dt,4)}, {v(BR,4)}, 0")
        A(f"{MF16} {im}, {v(GI+4*dt,4)}, {v(BR,4)}, 0")
        A(f"{MF16} {re}, {v(NGI+4*dt,4)}, {v(BI,4)}, {re}")
        A(f"{MF16} {im}, {v(GR+4*dt,4)}, {v(BI,4)}, {im}")
    cmul(RE, IM, RE, IM, WR, WI, T)
    pack(BR, RE, 8); pack(BI, IM, 8)
    for bt in range(2):
        re, im = v(RE+4*bt,4), v(IM+4*bt,4)
        A(f"{MF16} {re}, {v(GR+4*bt,4)}, {v(BR,4)}, 0")
        A(f"{MF16} {im}, {v(NGI+4*bt,4)}, {v(BR,4)}, 0")
        A(f"{MF16} {re}, {v(GI+4*bt,4)}, {v(BI,4)}, {re}")
        A(f"{MF16} {im}, {v(GR+4*bt,4)}, {v(BI,4)}, {im}")
    cmul(RE, IM, RE, IM, TWR, TWI, T, conj=True)
    pack(BR, RE, 8); pack(BI, IM, 8)
    for part, src in enumerate((BR, BI)):
        for t in range(2): A(f"ds_write_b64 v11, {v(src+2*t,2)} offset:{(t*2+part)*512}")
    A("s_waitcnt lgkmcnt(0)")
    A("s_barrier")
    for t in range(2):
        for q in range(2):
            for part in range(2):
                for hf in range(2):
                    A(f"ds_read_b64_tr_b16 {v(zf(part,t,q)+2*hf,2)}, v12 offset:{(((2*q+hf)*2+t)*2+part)*512}")
    A(f"s_add_u32 s56, s58, 0x{aout:x}"); A("s_add_u32 s57, s56, 4096")
    A(f"s_add_u32 s60, s58, 0x{dout:x}"); A("s_add_u32 s61, s60, 4096")
    for t in range(2):
        for q in range(2):
            A(f"s_waitcnt lgkmcnt({12-(t*2+q)*4})")
            re, im = v(RE+4*t,4), v(IM+4*t,4)
            A(f"{MF16} {re}, {v(FR+4*q,4)}, {v(zf(0,t,q),4)}, {re if q else 0}")
            A(f"{MF16} {im}, {v(NFI+4*q,4)}, {v(zf(0,t,q),4)}, {im if q else 0}")
            A(f"{MF16} {re}, {v(FI+4*q,4)}, {v(zf(1,t,q),4)}, {re}")
            A(f"{MF16} {im}, {v(FR+4*q,4)}, {v(zf(1,t,q),4)}, {im}")
    l = newlab("np")
    A("s_cmp_lg_u32 s2, 0"); A(f"s_cbranch_scc1 {l}")
    for k in range(8): A(f"v_mov_b32 v{IM+k}, 0")
    A.label(l)
    for k in range(0, 8, 2):
        A(f"v_pk_add_f32 {v(XFR+k,2)}, {v(XFR+k,2)}, {v(RE+k,2)}")
        A(f"v_pk_add_f32 {v(XFI+k,2)}, {v(XFI+k,2)}, {v(IM+k,2)}")
    pack(XR, XFR, 8); pack(XI, XFI, 8)
    vm.issue(f"buffer_store_dwordx4 {v(XR,4)}, v2, {WS}, s56 offen {ST}", "st")
    vm.issue(f"buffer_store_dwordx4 {v(XI,4)}, v2, {WS}, s57 offen {ST}", "st")
    if L:
        for k in range(0, 8, 2):
            A(f"v_pk_add_f32 {v(RE+k,2)}, {v(DFR_+k,2)}, {v(RE+k,2)}")
            A(f"v_pk_add_f32 {v(IM+k,2)}, {v(DFI_+k,2)}, {v(IM+k,2)}")
    pack(DR, RE, 8); pack(DI, IM, 8)
    vm.issue(f"buffer_store_dwordx4 {v(DR,4)}, v2, {WS}, s60 offen {ST}", "st")
    vm.issue(f"buffer_store_dwordx4 {v(DI,4)}, v2, {WS}, s61 offen {ST}", "st")

def roles():
    A("s_and_b32 s52, s2, 3"); A("s_lshl_b32 s52, s52, 2"); A("s_lshr_b32 s56, s2, 3"); A("s_and_b32 s56, s56, 3"); A("s_add_u32 s52, s52, s56")
    A("s_and_b32 s53, s2, 4"); A("s_lshl_b32 s53, s53, 1"); A("s_lshr_b32 s56, s2, 5"); A("s_add_u32 s53, s53, s56")
    A("s_and_b32 s55, s2, 7"); A("s_lshl_b32 s55, s55, 2"); A("s_lshr_b32 s56, s2, 3"); A("s_and_b32 s56, s56, 3"); A("s_add_u32 s55, s55, s56")
    A("s_lshr_b32 s54, s2, 5")
def wreg(i):
    if i < 32: return a(128+4*i, 4)
    if i < 40: return v(96+4*(i-32), 4)
    return a(4*(i-40), 4)
def a_loads(c, E, iss):
    for i in range(8):
        if i % 4 == 0: E(f"s_add_u32 s63, s62, {c*8192 + (i//4)*4096}")
        iss(f"buffer_load_dwordx4 {a((c%4)*32+i*4,4)}, v2, {WS}, s63 offen offset:{(i%4)*1024} {LD}", ("a", c))
def a_base():
    A("s_lshl_b32 s62, s52, 2"); A("s_add_u32 s62, s62, s3"); A("s_lshl_b32 s62, s62, 16"); A(f"s_add_u32 s62, s62, 0x{W1P:x}")
def w_setup(L):
    A(f"s_mul_i32 s64, s54, {112*2048}"); A(f"s_mul_i32 s65, s3, {28*2048}"); A("s_add_u32 s64, s64, s65")
    A(f"s_add_u32 s64, s64, 0x{(WDP, WD0)[L]:x}")
    if L == 0: A("s_and_b32 s65, s3, 1")
    else: A("s_lshr_b32 s65, s3, 1")
    A("s_lshl_b32 s65, s65, 10")
    A("v_add_u32 v62, s65, v2"); A("v_xor_b32 v63, 1024, v62")
def w_loads(lo, hi, E, iss):
    for i in range(lo, hi):
        st, t = i // 2, i % 2
        if i % 4 == 0: E(f"s_add_u32 s65, s64, {st*2048}")
        iss(f"buffer_load_dwordx4 {wreg(i)}, v{62+t}, {WS}, s65 offen offset:{(st%2)*2048} {LD}", "w")
def gemm1_pre(L):
    A("v_lshrrev_b32 v40, 4, v1"); A("v_and_b32 v41, 15, v1"); A("v_lshlrev_b32 v42, 2, v40"); A("v_xor_b32 v41, v41, v42")
    A("v_lshlrev_b32 v41, 4, v41"); A("v_lshl_add_u32 v13, v40, 12, v41")
    A("v_lshrrev_b32 v40, 2, v1"); A("v_and_b32 v40, 3, v40")
    A("v_lshl_add_u32 v41, v4, 3, v40"); A("v_lshlrev_b32 v41, 8, v41")
    A("v_and_b32 v42, 16, v1"); A("v_lshl_or_b32 v41, v42, 1, v41")
    A("v_and_b32 v42, 1, v1"); A("v_lshl_or_b32 v41, v42, 4, v41")
    A("v_and_b32 v42, 2, v1"); A("v_lshl_or_b32 v41, v42, 2, v41")
    A("v_xor_b32 v40, s3, v40"); A("v_lshl_or_b32 v8, v40, 6, v41")
    for k in range(1, 4): A(f"v_xor_b32 v{8+k}, {k<<6}, v8")
    A("s_lshl_b32 s56, s52, 12"); A("v_add_u32 v12, s56, v8")
    a_base()
    w_setup(L)
    A("s_lshl_b32 s58, s3, 16"); A("s_lshl_b32 s59, s53, 8"); A("s_add_u32 s58, s58, s59")
    if L == 0: A(f"s_add_u32 s58, s58, 0x{A1:x}")
    else:
        A(f"s_mov_b32 s56, 0x{A3:x}"); A(f"s_mov_b32 s57, 0x{D3:x}")
        A("s_cmp_ge_u32 s52, 14"); A("s_cselect_b32 s56, s57, s56"); A("s_add_u32 s58, s58, s56")
    A("s_lshl_b32 s59, s3, 12")
def gemm1(L):
    ACC, BF = 128, 64
    Hb = (H, H2)[L]; SSo = (SS1, SS3)[L]
    lidle = newlab("idle"); lend = newlab("g1e")
    if L == 0:
        A("s_cmp_ge_u32 s52, 14"); A(f"s_cbranch_scc1 {lidle}")
    def b_loads(c, E, iss):
        for k in range(4):
            E(f"s_add_u32 m0, s59, {(64*c+4*k)*256}")
            E(f"s_add_u32 s60, s58, {(64*c+4*k)*4096}")
            iss(f"buffer_load_dwordx4 v13, {WS}, s60 offen {LD} lds", ("b", c))
    b_loads(0, A, vm.issue)
    if L == 0: a_loads(0, A, vm.issue)
    b_loads(1, A, vm.issue)
    if L == 0: a_loads(1, A, vm.issue)
    fill = {ks: Rec() for ks in range(32)}
    if L == 0:
        plan = {0: [("b",2)], 1: [("a",2)], 2: [("b",3)], 3: [("a",3)], 4: [("b",4)], 5: [("a",4)], 6: [("b",5)], 7: [("b",6)], 8: [("b",7)], 9: [("a",5)], 12: [("a",6)], 16: [("a",7)]}
    else:
        plan = {0: [("b",2)], 1: [("b",3)], 2: [("b",4)], 3: [("b",5)], 4: [("b",6)], 5: [("b",7)], 6: [("a",4)], 8: [("a",5)], 12: [("a",6)], 16: [("a",7)]}
    for ks, items in plan.items():
        for kind, c in items:
            (a_loads if kind == "a" else b_loads)(c, fill[ks], fill[ks].vm)
    wplan = {10: (0,8), 11: (8,16), 13: (16,24), 14: (24,32), 15: (32,40), 21: (40,48), 24: (48,56)}
    for ks, (lo, hi) in wplan.items(): w_loads(lo, hi, fill[ks], fill[ks].vm)
    for n, ks in enumerate((17, 18, 19)):
        R = fill[ks]
        if n == 2:
            R("s_cmp_lt_u32 s52, 4"); R("s_cselect_b32 s56, 0x1c000, 0"); R("s_cselect_b32 s57, -1, 0")
            R("v_add_u32 v12, s56, v12")
        R.lg(f"ds_read_b64_tr_b16 v[16:17], v12 offset:{14*4096 if n == 1 else 0}", "ss")
        R.lg(f"ds_read_b64_tr_b16 v[18:19], v12 offset:{(14*4096 if n == 1 else 0)+1024}", "ss")
        R.lgwait("ss")
        for k in range(4):
            if n == 2: R(f"v_and_b32 v{16+k}, s57, v{16+k}")
            R(f"v_lshlrev_b32 v20, 16, v{16+k}"); R(f"v_and_b32 v21, 0xffff0000, v{16+k}")
            if n == 0 and k == 0:
                R("v_mul_f32 v22, v20, v20"); R("v_mul_f32 v23, v21, v21")
            else:
                R("v_fmac_f32 v22, v20, v20"); R("v_fmac_f32 v23, v21, v21")
    R = fill[20]
    R("v_add_f32 v22, v22, v23"); R("v_mov_b32 v23, v22"); R("v_lshlrev_b32 v20, 2, v5")
    R("s_lshl_b32 s56, s53, 9"); R("s_lshl_b32 s57, s3, 7"); R("s_add_u32 s56, s56, s57"); R(f"s_add_u32 s56, s56, 0x{SSo:x}")
    R("v_permlane32_swap_b32 v22, v23"); R("v_add_f32 v22, v22, v23")
    if L:
        R("s_cmp_ge_u32 s52, 14"); R(f"s_cselect_b32 s56, 0x{WS_SZ:x}, s56")
    def atom():
        A("s_mov_b32 exec_hi, 0")
        vm.issue(f"buffer_atomic_add_f32 v22, v20, {WS}, s56 offen sc1", "st")
        A("s_mov_b32 exec_hi, -1")
    R.l.append(atom)
    steps = [(ks, ntl) for ks in range(28) for ntl in range(4)] + [(ks, ntl) for ntl in range(4) for ks in range(28, 32)]
    NB = 8
    def rd(n, T):
        ks, ntl = steps[n]
        lg.issue(f"ds_read_b64_tr_b16 {v(BF+(n%NB)*4+2*T,2)}, v{8+ntl} offset:{(ks%16)*4096+T*1024}", ("B", n))
    def epi(ntl):
        R = Rec()
        g, u = ACC+ntl*16, ACC+(4+ntl)*16
        o = 24 + 16*(ntl % 2)
        lx = None
        R(f"s_xor_b32 s56, s3, {ntl}")
        if L == 0:
            mlp = True
        R2_ = Rec()
        for k in range(0, 16, 2):
            R2_(f"v_max_f32 v{g+k}, 0, v{g+k}"); R2_(f"v_max_f32 v{g+k+1}, 0, v{g+k+1}")
            R2_(f"v_mul_f32 v{u+k}, v{u+k}, v{g+k}"); R2_(f"v_mul_f32 v{u+k+1}, v{u+k+1}, v{g+k+1}")
            R2_(f"v_cvt_pk_bf16_f32 v{o+k//2}, v{u+k}, v{u+k+1}")
        R("s_lshr_b32 s57, s56, 1"); R("s_lshl_b32 s60, s53, 1"); R("s_add_u32 s57, s57, s60"); R("s_mul_i32 s57, s57, 229376")
        R("s_and_b32 s56, s56, 1"); R("s_lshl_b32 s56, s56, 10"); R("s_add_u32 s57, s57, s56"); R("s_add_u32 s57, s57, s61")
        R.l += R2_.l
        R.vm(f"buffer_store_dwordx4 {v(o,4)}, v2, {WS}, s57 offen {ST}", "st")
        R.vm(f"buffer_store_dwordx4 {v(o+4,4)}, v2, {WS}, s57 offen offset:2048 {ST}", "st")
        return R
    def epi_x3(ntl):
        R = Rec()
        o = 24 + 16*(ntl % 2)
        R(f"s_xor_b32 s56, s3, {ntl}"); R("s_lshl_b32 s56, s56, 15"); R("s_add_u32 s57, s56, s61")
        for mt in range(2):
            for k in range(8): R(f"v_cvt_pk_bf16_f32 v{o+8*mt+k}, v{ACC+(mt*4+ntl)*16+2*k}, v{ACC+(mt*4+ntl)*16+2*k+1}")
        for k in range(4): R.vm(f"buffer_store_dwordx4 {v(o+4*k,4)}, v2, {WS}, s57 offen offset:{k*1024} {ST}", "st")
        return R
    vm.wait(("b", 0))
    A("s_barrier")
    stamp(A, 8+L*6 if L == 0 else 13)
    PRE = 4
    for n in range(PRE): rd(n, 0); rd(n, 1)
    def run(lo, hi, epif):
        cur = []
        for n in range(lo, hi):
            ks, ntl = steps[n]
            c = ks // 4
            if n < 112 and ntl == 0:
                cur = list(fill[ks].l)
                per = (len(cur) + 7)//8
                if ks % 4 == 0: vm.wait(("a", c))
                if ks in (3, 7, 11):
                    vm.wait(("b", c+1)); A("s_barrier")
                if ks == 15:
                    vm.wait([("b", cc) for cc in range(8)]); A("s_barrier")
                    for k in range(4): A(f"v_add_u32 v{8+k}, 0x10000, v{8+k}")
            if n == 112: vm.wait(("a", 7)); cur = []; per = 0
            if n >= 112 and ks == 28 and ntl > 0:
                cur = cur + epif(ntl-1).l; per = -1
            lg.wait(("B", n))
            b = v(BF+(n%NB)*4, 4)
            for mt in range(2):
                acc = v(ACC+(mt*4+ntl)*16, 16)
                A(f"{MF32} {acc}, {a((c%4)*32+(ks%4)*8+mt*4,4)}, {b}, {acc if ks else 0}")
                if n + PRE < len(steps): rd(n+PRE, mt)
                k = per if per >= 0 else (0 if (ks == 28 and mt == 0) else 7)
                for _ in range(k):
                    if cur: cur.pop(0)()
        for f in cur: f()
    run(0, 112, None)
    A("s_lshl_b32 s61, s52, 2"); A("s_add_u32 s61, s61, s3")
    if L:
        lx3 = newlab("x3")
        A("s_cmp_ge_u32 s52, 14"); A(f"s_cbranch_scc1 {lx3}")
    A("s_lshl_b32 s61, s61, 12"); A(f"s_add_u32 s61, s61, 0x{Hb:x}")
    sv, sl = list(vm.q), list(lg.q)
    run(112, 128, epi)
    for f in epi(3).l: f()
    if L:
        A(f"s_branch {lend}")
        A.label(lx3)
        vm.q, lg.q = sv, sl
        A("s_sub_u32 s61, s61, 56"); A("s_lshl_b32 s61, s61, 12"); A("s_lshl_b32 s56, s53, 17"); A("s_add_u32 s61, s61, s56")
        A(f"s_add_u32 s61, s61, 0x{X3D:x}")
        run(112, 128, epi_x3)
        for f in epi_x3(3).l: f()
        A.label(lend)
        stamp(A, 14)
        arrive_local(6, "s53")
    else:
        stamp(A, 9)
        arrive_local(3, "s53")
        A(f"s_branch {lend}")
        A.label(lidle)
        w_loads(0, 56, A, lambda t, tag: A(t))
        A("s_waitcnt vmcnt(0)")
        A.label(lend)
    vm.q = []

def hreg(i):
    i %= 32
    return a(64+4*i, 4) if i < 16 else v(128+4*(i-16), 4)
def gemm2_pre(L):
    Hb = (H, H2)[L]
    A(f"s_mul_i32 s58, s55, 229376"); A(f"s_mul_i32 s59, s3, {28*2048}"); A("s_add_u32 s58, s58, s59"); A(f"s_add_u32 s58, s58, 0x{Hb:x}")
    A("s_lshr_b32 s66, s3, 1")
    A("s_and_b32 s67, s3, 1")
    A(f"s_lshl_b32 s59, s{66+L}, 10")
    A("v_add_u32 v8, s59, v2"); A("v_xor_b32 v9, 1024, v8")
    A("s_lshr_b32 s68, s55, 1")
    if L == 0:
        A("s_lshl_b32 s56, s54, 6"); A("s_lshl_b32 s57, s67, 5"); A("s_add_u32 s56, s56, s57")
        A("v_add_u32 v12, s56, v5")
        A("v_lshlrev_b32 v13, 12, v12"); A("v_lshl_add_u32 v13, v4, 4, v13")
        A("s_lshl_b32 s69, s55, 7"); A("s_lshl_b32 s57, s66, 6"); A("s_add_u32 s69, s69, s57")
        A("v_lshlrev_b32 v14, 5, v4")
    else:
        A("v_and_b32 v12, 3, v5"); A("v_lshlrev_b32 v12, 5, v12"); A("v_and_b32 v13, 4, v5"); A("v_lshl_or_b32 v12, v13, 2, v12")
        A("v_lshrrev_b32 v13, 3, v5"); A("v_or_b32 v12, v12, v13")
        A("v_lshlrev_b32 v13, 10, v12"); A("v_lshl_add_u32 v13, v4, 4, v13")
        A("s_lshr_b32 s69, s55, 1"); A("s_lshl_b32 s69, s69, 7"); A("s_and_b32 s57, s55, 1"); A("s_lshl_b32 s57, s57, 3"); A("s_add_u32 s69, s69, s57")
        A("s_lshl_b32 s57, s67, 2"); A("s_add_u32 s69, s69, s57"); A("s_lshl_b32 s69, s69, 10")
        A("s_lshl_b32 s57, s54, 7"); A("s_add_u32 s69, s69, s57"); A("s_lshl_b32 s57, s66, 6"); A("s_add_u32 s69, s69, s57")
        A("v_lshlrev_b32 v14, 2, v5")
        srd(A, 32, 18, 0, 2*MB)
def gemm2(L):
    ACC, TMP, PRE = 192, 128, 16
    def hld(st):
        if st % 2 == 0: A(f"s_add_u32 s59, s58, {st*2048}")
        for t in range(2):
            vm.issue(f"buffer_load_dwordx4 {hreg(2*st+t)}, v{8+t}, {WS}, s59 offen offset:{(st%2)*2048} {LD}", ("h", st))
    for st in range(16): hld(st)
    if L == 0:
        A("s_lshl_b32 s56, s69, 1"); A(f"s_add_u32 s56, s56, 0x{SS1:x}")
        for k in range(4):
            vm.issue(f"buffer_load_dwordx4 {v(PRE+16+4*k,4)}, v14, {WS}, s56 offen offset:{(k//2)*64+(k%2)*16} {LD}", "pre")
        A(f"s_add_u32 s56, s69, 0x{XH0:x}"); A(f"s_add_u32 s57, s69, 0x{D1:x}")
        vm.issue(f"buffer_load_dwordx4 {v(PRE,4)}, v13, {WS}, s56 offen {LD}", "pre")
        vm.issue(f"buffer_load_dwordx4 {v(PRE+4,4)}, v13, {WS}, s56 offen offset:32 {LD}", "pre")
        vm.issue(f"buffer_load_dwordx4 {v(PRE+8,4)}, v13, {WS}, s57 offen {LD}", "pre")
        vm.issue(f"buffer_load_dwordx4 {v(PRE+12,4)}, v13, {WS}, s57 offen offset:32 {LD}", "pre")
        fft_static_loads()
    else:
        A("s_lshl_b32 s56, s55, 8"); A("s_lshl_b32 s57, s67, 7"); A("s_add_u32 s56, s56, s57"); A(f"s_add_u32 s56, s56, 0x{SS3:x}")
        vm.issue(f"buffer_load_dword v{PRE+16}, v14, {WS}, s56 offen {LD}", "pre")
        vm.issue(f"buffer_load_dwordx4 {v(PRE,4)}, v13, {SX}, s69 offen", "pre")
        vm.issue(f"buffer_load_dwordx4 {v(PRE+4,4)}, v13, {SX}, s69 offen offset:32", "pre")
        A("s_lshl_b32 s56, s55, 1"); A("s_add_u32 s56, s56, s67"); A("s_lshl_b32 s56, s56, 4"); A("s_lshl_b32 s57, s54, 1")
        A("s_add_u32 s56, s56, s57"); A("s_add_u32 s56, s56, s66"); A("s_lshl_b32 s56, s56, 11"); A(f"s_add_u32 s56, s56, 0x{X3D:x}")
        vm.issue(f"buffer_load_dwordx4 {v(PRE+8,4)}, v2, {WS}, s56 offen {LD}", "pre")
        vm.issue(f"buffer_load_dwordx4 {v(PRE+12,4)}, v2, {WS}, s56 offen offset:1024 {LD}", "pre")
    R = Rec()
    R.vmwait("pre")
    R(f"s_mov_b32 s56, {flit(1/512)}"); R(f"v_mov_b32 v48, {flit(1e-5)}")
    nr = 16 if L == 0 else 1
    for k in range(nr): R(f"v_fma_f32 v{PRE+16+k}, v{PRE+16+k}, s56, v48")
    for k in range(nr): R(f"v_rcp_f32 v{PRE+16+k}, v{PRE+16+k}")
    cur = []
    for st in range(28):
        vm.wait(("h", st))
        if st == 0: stamp(A, 10 if L == 0 else 15)
        if st == 18: cur = R.l
        for t1 in range(2):
            for t2 in range(2):
                acc = v(ACC+(2*t1+t2)*16, 16)
                if L == 0: aa, bb = hreg(2*st+t1), wreg(2*st+t2)
                else: aa, bb = wreg(2*st+t1), hreg(2*st+t2)
                A(f"{MF32} {acc}, {aa}, {bb}, {acc if st else 0}")
                for _ in range(2):
                    if cur: cur.pop(0)()
        if st + 16 < 28: hld(st + 16)
    for q in (1, 2, 3):
        A(f"s_xor_b32 s56, s3, {q}"); A("s_mul_i32 s56, s56, 12288"); A(f"s_add_u32 s56, s56, {(q-1)*4096}")
        A("v_add_u32 v10, s56, v2")
        for k in range(4): A(f"ds_write_b128 v10, {v(ACC+16*q+4*k,4)} offset:{k*1024}")
    A("s_mul_i32 s56, s3, 12288"); A("v_add_u32 v10, s56, v2")
    EX, ED = 96, 112
    unpack(EX, PRE, 16); unpack(ED, PRE+8, 16)
    if L:
        for k in range(0, 16, 2): A(f"v_pk_add_f32 {v(ED+k,2)}, {v(ED+k,2)}, {v(EX+k,2)}")
    A("s_waitcnt lgkmcnt(0)")
    A("s_barrier")
    for q in range(3):
        for k in range(4): A(f"ds_read_b128 {v(TMP+16*q+4*k,4)}, v10 offset:{q*4096+k*1024}")
    for q in range(3):
        A(f"s_waitcnt lgkmcnt({8-4*q})")
        for k in range(0, 16, 2): A(f"v_pk_add_f32 {v(ACC+k,2)}, {v(ACC+k,2)}, {v(TMP+16*q+k,2)}")
    if L == 0:
        for k in range(0, 16, 2): A(f"v_pk_fma_f32 {v(ACC+k,2)}, {v(ACC+k,2)}, {v(PRE+16+k,2)}, {v(ED+k,2)}")
        pack(PRE, ACC, 16)
        A(f"s_add_u32 s56, s69, 0x{D2:x}")
        vm.issue(f"buffer_store_dwordx4 {v(PRE,4)}, v13, {WS}, s56 offen {ST}", "st")
        vm.issue(f"buffer_store_dwordx4 {v(PRE+4,4)}, v13, {WS}, s56 offen offset:32 {ST}", "st")
        A("v_cmp_ne_u32 vcc, 1, v12")
        for k in range(0, 16, 2):
            A(f"v_pk_add_f32 {v(EX+k,2)}, {v(EX+k,2)}, {v(ACC+k,2)}")
            A(f"v_pk_mul_f32 {v(EX+k,2)}, {v(EX+k,2)}, {v(EX+k,2)}")
        for k in range(16): A(f"v_cndmask_b32 v{EX+k}, 0, v{EX+k}, vcc")
        for k in range(8): A(f"v_permlane16_swap_b32 v{EX+k}, v{EX+8+k}")
        for k in range(0, 8, 2): A(f"v_pk_add_f32 {v(EX+k,2)}, {v(EX+k,2)}, {v(EX+8+k,2)}")
        for sh in (8, 4, 2, 1):
            for k in range(8): A(f"v_add_f32_dpp v{EX+k}, v{EX+k}, v{EX+k} row_ror:{sh} row_mask:0xf bank_mask:0xf")
        A("v_and_b32 v10, 16, v1"); A("v_lshlrev_b32 v10, 2, v10"); A("v_lshl_or_b32 v10, v4, 5, v10")
        A("s_lshl_b32 s56, s67, 8"); A("s_lshl_b32 s57, s66, 7"); A("s_add_u32 s56, s56, s57"); A("v_add_u32 v10, s56, v10")
        A("s_mov_b32 exec_lo, 0x00010001"); A("s_mov_b32 exec_hi, 0x00010001")
        A(f"ds_write_b128 v10, {v(EX,4)} offset:49152"); A(f"ds_write_b128 v10, {v(EX+4,4)} offset:{49152+16}")
        A("s_mov_b64 exec, -1")
        A("s_waitcnt lgkmcnt(0)")
        A("s_barrier")
        l = newlab("na")
        A("s_cmp_lg_u32 s3, 0"); A(f"s_cbranch_scc1 {l}")
        A("v_lshlrev_b32 v10, 2, v1")
        A("ds_read_b32 v48, v10 offset:49152"); A(f"ds_read_b32 v49, v10 offset:{49152+256}")
        A("s_lshl_b32 s56, s55, 8"); A(f"s_add_u32 s56, s56, 0x{SS2:x}")
        A("s_waitcnt lgkmcnt(0)")
        A("v_add_f32 v48, v48, v49")
        A(f"buffer_atomic_add_f32 v48, v10, {WS}, s56 offen sc1")
        A.label(l)
    else:
        for k in range(0, 16, 2): A(f"v_pk_fma_f32 {v(ACC+k,2)}, {v(ACC+k,2)}, {v(PRE+16,2)}, {v(ED+k,2)} op_sel_hi:[1,0,1]")
        pack(PRE, ACC, 16)
        A(f"buffer_store_dwordx4 {v(PRE,4)}, v13, {R2}, s69 offen")
        A(f"buffer_store_dwordx4 {v(PRE+4,4)}, v13, {R2}, s69 offen offset:32")

def main(path):
    entry(A, KN)
    A("s_cmp_ge_u32 s2, 256")
    A("s_cbranch_scc1 Lend")
    A("s_load_dwordx16 s[4:19], s[0:1], 0")
    A("s_load_dwordx4 s[20:23], s[0:1], 64")
    stamp(A, 0, False)
    A("v_lshrrev_b32 v1, 6, v0")
    A("v_readfirstlane_b32 s3, v1")
    A("v_and_b32 v1, 63, v0")
    A("v_lshlrev_b32 v2, 4, v1")
    A("v_and_b32 v3, 31, v1")
    A("v_lshrrev_b32 v4, 5, v1")
    A("v_and_b32 v5, 0xfffffff3, v3"); A("v_and_b32 v6, 4, v3"); A("v_lshl_or_b32 v5, v6, 1, v5")
    A("v_and_b32 v6, 8, v3"); A("v_lshrrev_b32 v6, 1, v6"); A("v_or_b32 v5, v5, v6")
    p1()
    roles()
    fft_tables()
    stamp(A, 5)
    wait_global(1)
    fft(0)
    arrive_global(2)
    stamp(A, 7)
    gemm1_pre(0)
    wait_global(2)
    gemm1(0)
    gemm2_pre(0)
    wait_local(3, "s68", 14)
    gemm2(0)
    arrive_global(4)
    stamp(A, 11)
    fft_tables()
    a_base()
    wait_global(4)
    fft(1, lambda: [a_loads(c, A, vm.issue) for c in range(4)])
    arrive_global(5)
    gemm1_pre(1)
    wait_global(5)
    gemm1(1)
    gemm2_pre(1)
    wait_local(6, "s68", 16)
    gemm2(1)
    if TRACE:
        A("s_waitcnt vmcnt(0) lgkmcnt(0)")
        A("s_memrealtime s[56:57]")
        A("s_waitcnt lgkmcnt(0)")
        A("s_lshl_b32 s58, s2, 2"); A("s_add_u32 s58, s58, s3"); A("s_lshl_b32 s58, s58, 7"); A(f"s_add_u32 s58, s58, 0x{TRBASE:x}")
        A("v_mov_b32 v0, 0")
        for i in range(16):
            A(f"v_mov_b32 v1, s{70+2*i}")
            A(f"buffer_store_dword v1, v0, {WS}, s58 offen offset:{4*i}")
        A("v_mov_b32 v1, s56")
        A(f"buffer_store_dword v1, v0, {WS}, s58 offen offset:64")
    A.label("Lend")
    A("s_endpgm")
    hdr = f"; @launch grid=(256,1,1) block=(256,1,1) lds={LDS_TOTAL}\n"
    open(path, "w").write(hdr + HDR + A.text() + '.section .rodata,"a"\n' + kd(KN, 512, accum=256))

if __name__ == "__main__":
    main(sys.argv[1])
```

```python
import sys
from common import *
from layout import *

MF16 = "v_mfma_f32_16x16x32_bf16"
MF32 = "v_mfma_f32_32x32x16_bf16"
KN = "interleave_layers__spectral_gfnet__glu_gated_reglu__prompt_kernel"
WS = "s[24:27]"; SX = "s[28:31]"; R2 = "s[32:35]"; R3 = "s[36:39]"; R4 = "s[40:43]"; R5 = "s[44:47]"; DBG = "s[48:51]"
LDS_FFT = 131072
LDS_TOTAL = 131072 + 16384
SPIN = 400000
NPRE0 = 4
NXB0 = 5
NB4 = 5
LD = "sc1"
ST = "sc1"

class Q:
    def __init__(self, A, name, mx): self.A = A; self.q = []; self.name = name; self.mx = mx
    def issue(self, text, tag): self.A(text); self.q.append(tag)
    def wtext(self, tags):
        if not isinstance(tags, (list, set)): tags = [tags]
        idx = max([i for i, t in enumerate(self.q) if t in tags], default=-1)
        if idx < 0: return None
        n = len(self.q) - 1 - idx
        self.q = self.q[idx+1:]
        return f"s_waitcnt {self.name}({min(n, self.mx)})"
    def wait(self, tags):
        t = self.wtext(tags)
        if t: self.A(t)
    def drain(self):
        self.A(f"s_waitcnt {self.name}(0)"); self.q = []

A = Asm()
vm = Q(A, "vmcnt", 63)
lg = Q(A, "lgkmcnt", 15)
_lab = [0]
def newlab(p):
    _lab[0] += 1
    return f"L{p}{_lab[0]}"

SEL = os.environ.get("STAMPS", "start p1_issued p1_data p1_ga arr1 gb_done fft0_data arr2 g1a_first g1a_done g2a_first arr4 fft1_data g1b_first g1b_done g2b_first").split()
def mark(name, wait=True):
    if TRACE and name in SEL: stamp(A, SEL.index(name), wait)
def pack(dst, src, n):
    for k in range(n//2): A(f"v_cvt_pk_bf16_f32 v{dst+k}, v{src+2*k}, v{src+2*k+1}")
def unpack(dst, src, n):
    for k in range(n//2):
        A(f"v_lshlrev_b32 v{dst+2*k}, 16, v{src+k}")
        A(f"v_and_b32 v{dst+2*k+1}, 0xffff0000, v{src+k}")
def cmul(dr, di, ar, ai, br, bi, t, conj=False, lo=0, hi=8):
    for k in range(lo, hi, 2):
        A(f"v_pk_mul_f32 {v(t,2)}, {v(ai+k,2)}, {v(bi+k,2)}")
        A(f"v_pk_mul_f32 {v(t+2,2)}, {v(ar+k,2)}, {v(bi+k,2)}")
        ng = " neg_lo:[0,0,1] neg_hi:[0,0,1]"
        A(f"v_pk_fma_f32 {v(dr+k,2)}, {v(ar+k,2)}, {v(br+k,2)}, {v(t,2)}{'' if conj else ng}")
        A(f"v_pk_fma_f32 {v(di+k,2)}, {v(ai+k,2)}, {v(br+k,2)}, {v(t+2,2)}{ng if conj else ''}")

class Drip:
    def __init__(self, items, every): self.items = list(items); self.every = every
    def __enter__(self):
        self.orig = Asm.__call__; self.n = 0; self.busy = False
        me = self
        def call(obj, text):
            me.orig(obj, text)
            t = text.strip()
            if me.busy or t.startswith(("s_cmp", "s_cbranch", "s_branch", "s_mov_b64 exec", "s_mov_b32 exec")) or me.hold: return
            me.n += 1
            if me.n % me.every == 0 and me.items:
                me.busy = True
                for f in me.items.pop(0): f()
                me.busy = False
        self.hold = False
        Asm.__call__ = call
        return self
    def __exit__(self, *a):
        Asm.__call__ = self.orig
        for it in self.items:
            for f in it: f()
def splitl(fn, *args):
    R = Rec(); marks = []; out = []
    def iss(t, tag): R.vm(t, tag); marks.append(len(R.l))
    fn(*args, R, iss)
    p = 0
    for m in marks: out.append(R.l[p:m]); p = m
    return out
class Rec:
    def __init__(self): self.l = []
    def __call__(self, text): self.l.append(lambda t=text: A(t))
    def vm(self, text, tag): self.l.append(lambda: vm.issue(text, tag))
    def lg(self, text, tag): self.l.append(lambda: lg.issue(text, tag))
    def vmwait(self, tags): self.l.append(lambda: vm.wait(tags))
    def lgwait(self, tags): self.l.append(lambda: lg.wait(tags))

def sync_off(b): return SYNC + b*0x8000
def arrive_global(b, tags=None, sync=True):
    if sync:
        if tags is None: vm.drain()
        else: vm.wait(tags)
        A("s_barrier")
    l = newlab("ar")
    A("s_cmp_lg_u32 s3, 0")
    A(f"s_cbranch_scc1 {l}")
    A("v_mov_b32 v6, 0"); A("v_mov_b32 v7, 1")
    A("s_mov_b64 exec, 1")
    if b == 1:
        A("s_and_b32 s56, s2, 1"); A("s_lshl_b32 s56, s56, 6")
        A(f"buffer_atomic_add v7, v6, {DBG}, s56 offen sc1")
    else:
        A("s_and_b32 s56, s2, 15"); A("s_lshl_b32 s56, s56, 8"); A(f"s_add_u32 s56, s56, 0x{sync_off(b):x}")
        A(f"buffer_atomic_add v7, v6, {WS}, s56 offen sc1")
    A("s_mov_b64 exec, -1")
    A.label(l)
def poll(srd, voff, soff, nl, target, sleep=1):
    p = newlab("pl"); x = newlab("px")
    A(f"s_mov_b64 exec, 0x{(1<<nl)-1:x}")
    A("s_mov_b32 s57, 0")
    A.label(p)
    A(f"buffer_load_dword v7, {voff}, {srd}, {soff} offen sc1")
    A("s_waitcnt vmcnt(0)")
    A(f"v_cmp_gt_u32 vcc, {target}, v7")
    A(f"s_cbranch_vccz {x}")
    if sleep: A(f"s_sleep {sleep}")
    A("s_add_u32 s57, s57, 1")
    A(f"s_cmp_lt_u32 s57, {SPIN}")
    A(f"s_cbranch_scc1 {p}")
    A.label(x)
def wait_global(b):
    l = newlab("wt"); nm = newlab("nm"); dn = newlab("dn")
    A("s_cmp_lg_u32 s3, 0")
    A(f"s_cbranch_scc1 {l}")
    A("s_cmp_lg_u32 s2, 255")
    A(f"s_cbranch_scc1 {nm}")
    if b == 1:
        A("v_lshlrev_b32 v6, 6, v1")
        poll(DBG, "v6", "0", 2, 128, 0)
        A("s_mov_b64 exec, 1")
        A("v_mov_b32 v6, 128"); A("v_mov_b32 v7, 1")
        A(f"buffer_store_dword v7, v6, {DBG}, 0 offen sc1")
    else:
        A("v_lshlrev_b32 v6, 8, v1")
        A(f"s_mov_b32 s56, 0x{sync_off(b):x}")
        poll(WS, "v6", "s56", 16, 16, 0)
        A("s_mov_b64 exec, 0xff")
        A("v_mov_b32 v7, 1")
        A(f"s_mov_b32 s56, 0x{sync_off(b)+0x4000:x}")
        A(f"buffer_store_dword v7, v6, {WS}, s56 offen sc1")
    A(f"s_branch {dn}")
    A.label(nm)
    if b == 1:
        A("v_mov_b32 v6, 128")
        poll(DBG, "v6", "0", 1, 1)
    else:
        A("v_mov_b32 v6, 0")
        A("s_and_b32 s56, s2, 7"); A("s_lshl_b32 s56, s56, 8"); A(f"s_add_u32 s56, s56, 0x{sync_off(b)+0x4000:x}")
        poll(WS, "v6", "s56", 1, 1)
    A.label(dn)
    A("s_mov_b64 exec, -1")
    A.label(l)
    A("s_barrier")
def arrive_local(b, ysg, tags=None):
    if tags is None: vm.drain()
    else: vm.wait(tags)
    A("s_barrier")
    l = newlab("ar")
    A("s_cmp_lg_u32 s3, 0")
    A(f"s_cbranch_scc1 {l}")
    A("v_mov_b32 v6, 0"); A("v_mov_b32 v7, 1")
    A("s_mov_b64 exec, 1")
    A(f"s_lshl_b32 s56, {ysg}, 8"); A(f"s_add_u32 s56, s56, 0x{sync_off(b):x}")
    A(f"buffer_atomic_add v7, v6, {WS}, s56 offen sc1")
    A("s_mov_b64 exec, -1")
    A.label(l)
def wait_local(b, ysg, target):
    l = newlab("wt")
    A("s_cmp_lg_u32 s3, 0")
    A(f"s_cbranch_scc1 {l}")
    A("v_mov_b32 v6, 0")
    A(f"s_lshl_b32 s56, {ysg}, 8"); A(f"s_add_u32 s56, s56, 0x{sync_off(b):x}")
    poll(WS, "v6", "s56", 1, target)
    A("s_mov_b64 exec, -1")
    A.label(l)
    A("s_barrier")

def interleave(mf, fill, start=0, per=None):
    n = len(mf); k = 0
    for i, m in enumerate(mf):
        m()
        if i >= start:
            tgt = (i - start + 1)*len(fill)//(n - start) if per is None else min(len(fill), (i-start+1)*per)
            while k < tgt: fill[k](); k += 1
    while k < len(fill): fill[k](); k += 1

XA, XC, XB = 0, 32768, 65536
DFR = 96
AC = 192
def phi(ks): return a(4*(ks % 16), 4)
def swap64(x):
    for k in range(4): A(f"v_permlane16_swap_b32 v{x+k}, v{x+4+k}")
def rowgemm(base, fill):
    order = [k for i in range(16) for k in (i, i+16)]
    def rd(n):
        ks = order[n]
        lg.issue(f"ds_read_b128 {v(DFR+(n%8)*4,4)}, v{48+ks%8} offset:{base+(ks//8)*256}", n)
    for n in range(7): rd(n)
    mf = []
    for n, ks in enumerate(order):
        def m(n=n, ks=ks):
            if n + 7 < 32: rd(n+7)
            lg.wait(n)
            acc = v(AC+16*(ks//16), 16)
            A(f"{MF32} {acc}, {v(DFR+(n%8)*4,4)}, {phi(ks)}, {acc if n >= 2 else 0}")
        mf.append(m)
    interleave(mf, fill)
    for k in range(0, 16, 2):
        A(f"v_pk_fma_f32 {v(AC+k,2)}, {v(AC+16+k,2)}, v[46:47], {v(AC+k,2)} op_sel_hi:[1,0,1]")
    pack(56, AC, 16)
def p1():
    A("s_and_b32 s52, s2, 7"); A("s_lshr_b32 s56, s2, 5"); A("s_lshl_b32 s56, s56, 3"); A("s_add_u32 s52, s52, s56")
    A("s_lshr_b32 s53, s2, 1"); A("s_and_b32 s53, s53, 12"); A("s_add_u32 s53, s53, s3")
    A("s_and_b32 s67, s3, 1"); A("s_lshr_b32 s68, s3, 1")
    A("s_lshl_b32 s56, s67, 7")
    A("v_xor_b32 v44, s56, v2")
    for i in range(1, 8): A(f"v_xor_b32 v{47+i}, {i<<4}, v44")
    A("s_lshr_b32 s56, s52, 2"); A("s_lshl_b32 s56, s56, 7")
    A("s_and_b32 s57, s52, 3"); A("s_lshl_b32 s57, s57, 2"); A("s_add_u32 s56, s56, s57")
    A("s_lshl_b32 s57, s67, 4"); A("s_add_u32 s56, s56, s57")
    A("s_lshl_b32 s57, s68, 1"); A("s_add_u32 s56, s56, s57")
    A("s_lshl_b32 s56, s56, 10")
    A("s_lshl_b32 s69, s3, 13")
    A("s_lshl_b32 s54, s2, 2"); A("s_add_u32 s54, s54, s3")
    A("s_lshl_b32 s65, s54, 1")
    A("s_and_b32 s60, s65, 0x780")
    A("s_and_b32 s57, s65, 3"); A("s_lshl_b32 s57, s57, 5"); A("s_or_b32 s60, s60, s57")
    A("s_and_b32 s57, s65, 4"); A("s_lshl_b32 s57, s57, 2"); A("s_or_b32 s60, s60, s57")
    A("s_lshr_b32 s57, s65, 3"); A("s_and_b32 s57, s57, 15"); A("s_or_b32 s60, s60, s57")
    A("s_lshl_b32 s60, s60, 10")
    A("s_add_u32 s61, s60, 32768")
    A("s_mov_b32 s30, 0x200000"); A("s_mov_b32 s31, 0x20000")
    A("s_waitcnt lgkmcnt(0)")
    mark("p1_args")
    A("s_mov_b32 s28, s4"); A("s_mov_b32 s29, s5")
    for i in range(8):
        A(f"s_add_u32 m0, s69, {XA+i*1024}")
        A(f"s_add_u32 s57, s56, {((i&3)*32+(i>>2))*1024}")
        vm.issue(f"buffer_load_dwordx4 v{47+i if i else 44}, {SX}, s57 offen lds", "xa")
    vm.issue(f"buffer_load_dwordx4 v[16:19], v2, {SX}, s60 offen", "rs")
    vm.issue(f"buffer_load_dwordx4 v[20:23], v2, {SX}, s61 offen", "rs")
    srd(A, 32, 6, 0, 2048*257*2)
    srd(A, 36, 8, 0, 2048*257*2)
    A("s_and_b32 s56, s2, 1"); A("s_lshl_b32 s56, s56, 7"); A("s_lshl_b32 s57, s3, 5"); A("s_add_u32 s56, s56, s57")
    A("v_and_b32 v10, 15, v1"); A("v_add_u32 v10, s56, v10")
    A("v_mov_b32 v11, 256")
    A("v_cmp_eq_u32 vcc, 0, v10")
    A("v_cndmask_b32 v11, v10, v11, vcc")
    A("v_lshrrev_b32 v13, 4, v1")
    A("v_mul_u32_u24 v12, 514, v13")
    A("v_lshl_add_u32 v11, v11, 1, v12")
    A("v_lshl_add_u32 v12, v10, 1, v12")
    A("s_lshr_b32 s60, s2, 1"); A("s_and_b32 s60, s60, 15")
    A("s_lshr_b32 s61, s2, 5")
    A("s_lshl_b32 s64, s61, 8"); A("s_lshl_b32 s57, s60, 2"); A("s_add_u32 s64, s64, s57"); A("s_mul_i32 s64, s64, 514")
    A("v_lshlrev_b32 v45, 13, v10"); A("v_lshl_add_u32 v45, v13, 4, v45")
    A("s_lshr_b32 s62, s60, 2"); A("s_lshl_b32 s62, s62, 11"); A("s_lshl_b32 s57, s61, 8"); A("s_add_u32 s62, s62, s57")
    A("s_and_b32 s57, s60, 3"); A("s_lshl_b32 s57, s57, 6"); A("s_add_u32 s62, s62, s57"); A(f"s_add_u32 s62, s62, 0x{WT:x}")
    A(f"s_add_u32 s63, s62, {16*8192}")
    bg = []
    for e in range(4):
        R = Rec(); R.vm(f"buffer_load_ushort v{24+e}, v11, {R2}, s64 offen", "wt"); bg.append(R.l)
        R = Rec(); R.vm(f"buffer_load_ushort v{28+e}, v11, {R3}, s64 offen", "wt"); bg.append(R.l)
        R = Rec(); R.vm(f"buffer_load_ushort v{32+e}, v12, {R2}, s64 offen offset:32", "wt"); bg.append(R.l)
        R = Rec(); R.vm(f"buffer_load_ushort v{36+e}, v12, {R3}, s64 offen offset:32", "wt")
        if e < 3: R(f"s_add_u32 s64, s64, {64*514}")
        bg.append(R.l)
    srd(A, 40, 12, 0, F*D*2)
    srd(A, 44, 14, 0, F*D*2)
    srd(A, 24, 16, 0, F*D*2)
    A("s_mul_i32 s60, s54, 1792")
    A("v_lshlrev_b32 v9, 5, v1")
    for sr in (R4, R5, WS):
        vm.issue(f"buffer_load_dword v8, v9, {sr}, s60 offen", "warm")
    mark("p1_ld1")
    with Drip(bg, 11):
        A("s_lshl_b32 s56, s53, 5")
        A("v_add_u32 v40, s56, v5")
        A("v_lshrrev_b32 v41, 1, v40")
        A("v_and_b32 v42, 1, v40")
        A("v_cvt_f32_u32 v43, v41")
        A(f"v_mul_f32 v43, {flit(1/512)}, v43")
        A("v_cvt_f32_u32 v48, v42")
        A(f"v_mul_f32 v48, {flit(0.25)}, v48")
        A(f"v_mov_b32 v49, {flit(0.125)}")
        A("v_cmp_eq_u32 vcc, 0, v41")
        A("v_cndmask_b32 v48, v48, v49, vcc")
        A("v_mov_b32 v49, 0.5")
        A("v_cmp_eq_u32 vcc, 0, v40")
        A("v_cndmask_b32 v43, v43, v49, vcc")
        A("v_lshlrev_b32 v49, 31, v41")
        A("v_or_b32 v46, 1.0, v49")
        A("v_lshlrev_b32 v49, 3, v4")
        A("v_cvt_f32_u32 v49, v49")
        A("v_fma_f32 v48, v43, v49, v48")
        A(f"v_mul_f32 v50, {flit(16.0)}, v43")
        A("v_cos_f32 v50, v50")
        C = [96, 104, 112]
        for kk in range(2):
            for t in range(8): A(f"v_fmamk_f32 v{C[kk]+t}, v43, {flit(16*kk+t)}, v48")
        A("v_add_f32 v50, v50, v50")
        for kk in range(2):
            for t in range(8): A(f"v_cos_f32 v{C[kk]+t}, v{C[kk]+t}")
        A(f"s_mov_b32 s56, {flit(1/16)}")
        for kk in range(2):
            for t in range(0, 8, 2): A(f"v_pk_mul_f32 {v(C[kk]+t,2)}, {v(C[kk]+t,2)}, s[56:57] op_sel_hi:[1,0]")
        def phiout(ks, src):
            pack(120, src, 8)
            for k in range(4): A(f"v_accvgpr_write_b32 a{4*ks+k}, v{120+k}")
        phiout(0, C[0]); phiout(1, C[1])
        for ks in range(2, 16):
            p, c, n = C[(ks-2)%3], C[(ks-1)%3], C[ks%3]
            for t in range(0, 8, 2):
                A(f"v_pk_fma_f32 {v(n+t,2)}, {v(c+t,2)}, v[50:51], {v(p+t,2)} op_sel_hi:[1,0,1] neg_lo:[0,0,1] neg_hi:[0,0,1]")
            phiout(ks, n)
    mark("p1_phi")
    srd(A, 24, 22, 0, WS_SZ)
    srd(A, 48, 20, 0, 256)
    lz = newlab("z")
    A("s_cmp_lt_u32 s2, 224")
    A(f"s_cbranch_scc1 {lz}")
    A("s_sub_u32 s56, s54, 896")
    A("v_mov_b32 v40, 0\nv_mov_b32 v41, 0\nv_mov_b32 v42, 0\nv_mov_b32 v43, 0")
    A("s_cmp_ge_u32 s56, 24")
    lz2 = newlab("z")
    A(f"s_cbranch_scc1 {lz2}")
    A("s_lshl_b32 s57, s56, 10"); A(f"s_add_u32 s57, s57, 0x{SS1:x}")
    A(f"buffer_store_dwordx4 v[40:43], v2, {WS}, s57 offen sc1")
    A(f"s_branch {lz}")
    A.label(lz2)
    A("s_cmp_ge_u32 s56, 40")
    A(f"s_cbranch_scc1 {lz}")
    A("s_sub_u32 s57, s56, 24"); A("s_lshl_b32 s57, s57, 14"); A(f"s_add_u32 s57, s57, 0x{SYNC:x}")
    A("v_lshlrev_b32 v41, 8, v1")
    A(f"buffer_store_dword v40, v41, {WS}, s57 offen sc1")
    A.label(lz)
    A("s_cmp_lt_u32 s52, 56")
    A(f"s_cselect_b32 s42, {F*D*2}, 0")
    A(f"s_cselect_b32 s46, {F*D*2}, 0")
    A("s_cmp_ge_u32 s52, 28")
    A("s_cselect_b32 s40, s14, s12"); A("s_cselect_b32 s41, s15, s13")
    A("s_cselect_b32 s66, 1, 0")
    A("s_mul_i32 s56, s66, 28"); A("s_sub_u32 s55, s52, s56")
    A("s_mov_b32 s44, s16"); A("s_mov_b32 s45, s17")
    A("v_lshrrev_b32 v40, 3, v1"); A("v_mul_u32_u24 v40, 3584, v40")
    A("v_and_b32 v41, 7, v1"); A("v_lshrrev_b32 v42, 2, v1"); A("v_and_b32 v42, 4, v42"); A("v_xor_b32 v41, v41, v42")
    A("v_lshl_add_u32 v47, v41, 4, v40")
    A("v_and_b32 v40, 15, v3"); A("v_xor_b32 v40, v40, v4"); A("v_lshlrev_b32 v40, 4, v40")
    A("v_lshl_add_u32 v48, v3, 10, v40")
    for q in range(1, 8): A(f"v_xor_b32 v{48+q}, {q<<5}, v48")
    A("s_lshl_b32 s60, s53, 17"); A("s_lshl_b32 s57, s52, 6"); A("s_add_u32 s60, s60, s57")
    if XH0: A(f"s_add_u32 s60, s60, 0x{XH0:x}")
    A("s_add_u32 s61, s60, 65536")
    A("v_and_b32 v40, 15, v5"); A("v_lshlrev_b32 v40, 12, v40"); A("v_lshl_add_u32 v40, v4, 4, v40")
    A("v_and_b32 v41, 16, v1"); A("v_lshl_add_u32 v14, v41, 1, v40")
    A("s_lshl_b32 s64, s65, 2"); A(f"s_add_u32 s64, s64, 0x{SS0:x}")
    mark("p1_issued")
    vm.wait("rs")
    A("s_barrier")
    mark("p1_data")
    R = Rec()
    X = 64
    R("v_readfirstlane_b32 s56, v16"); R("v_readfirstlane_b32 s57, v20")
    for r in range(2):
        for k in range(4):
            R(f"v_lshlrev_b32 v{X+8*r+2*k}, 16, v{16+4*r+k}"); R(f"v_and_b32 v{X+8*r+2*k+1}, 0xffff0000, v{16+4*r+k}")
    R("s_lshl_b32 s56, s56, 16"); R("s_lshl_b32 s57, s57, 16")
    for k in range(8):
        for r in range(2): R(f"v_subrev_f32 v{X+8*r+k}, s{56+r}, v{X+8*r+k}")
    for r in range(2):
        R(f"v_add_f32 v{80+r}, v{X+8*r}, v{X+8*r+1}"); R(f"v_mul_f32 v{82+r}, v{X+8*r}, v{X+8*r}")
    for k in range(1, 8):
        for r in range(2):
            if k > 1: R(f"v_add_f32 v{80+r}, v{80+r}, v{X+8*r+k}")
            R(f"v_fmac_f32 v{82+r}, v{X+8*r+k}, v{X+8*r+k}")
    R("v_permlane32_swap_b32 v80, v82"); R("v_permlane32_swap_b32 v81, v83")
    R("v_add_f32 v80, v80, v82"); R("v_add_f32 v81, v81, v83")
    R("v_permlane16_swap_b32 v80, v81")
    R("v_add_f32 v80, v80, v81")
    for sh in (8, 4, 2, 1): R(f"v_add_f32_dpp v80, v80, v80 row_ror:{sh} row_mask:0xf bank_mask:0xf")
    R("v_mov_b32 v81, v80")
    R("v_permlane32_swap_b32 v80, v81")
    R(f"v_mul_f32 v82, {flit(-1/512)}, v80")
    R("v_fmac_f32 v81, v82, v80")
    R("v_max_f32 v81, 0, v81")
    R("v_lshrrev_b32 v82, 2, v1")
    def sst():
        A("s_mov_b64 exec, 0x10001")
        vm.issue(f"buffer_store_dword v81, v82, {WS}, s64 offen {ST}", "st")
        A("s_mov_b64 exec, -1")
    R.l.append(sst)
    rowgemm(XA, R.l)
    swap64(56)
    vm.issue(f"buffer_store_dwordx4 v[56:59], v14, {WS}, s60 offen {ST}", "st")
    vm.issue(f"buffer_store_dwordx4 v[60:63], v14, {WS}, s61 offen {ST}", "st")
    mark("p1_ga")
    vm.wait("wt")
    mark("p1_wt")
    for e in range(4):
        A(f"v_lshl_or_b32 v{24+e}, v{28+e}, 16, v{24+e}")
        A(f"v_lshl_or_b32 v{32+e}, v{36+e}, 16, v{32+e}")
    vm.issue(f"buffer_store_dwordx4 v[24:27], v45, {WS}, s62 offen {ST}", "st")
    vm.issue(f"buffer_store_dwordx4 v[32:35], v45, {WS}, s63 offen {ST}", "st")
    A(f"s_mul_i32 s60, s3, {128*3584}"); A("s_lshl_b32 s57, s55, 7"); A("s_add_u32 s60, s60, s57")
    A("s_lshl_b32 s64, s3, 14")
    bg = []
    for i in range(16):
        R = Rec()
        R(f"s_add_u32 m0, s64, {XB+i*1024}")
        R(f"s_add_u32 s61, s60, {i*8*3584}")
        R.vm(f"buffer_load_dwordx4 v47, {R4}, s61 offen lds", "xb")
        bg.append(R.l)
    for r in bg[:NXB0]:
        for f in r: f()
    bg = bg[NXB0:]
    mark("p1_xb")
    arrive_global(1, "st")
    mark("arr1")
    A("s_lshl_b32 s62, s52, 5"); A("s_lshl_b32 s57, s68, 4"); A("s_add_u32 s62, s62, s57")
    A("s_lshl_b32 s57, s67, 2"); A("s_add_u32 s62, s62, s57"); A("s_lshl_b32 s62, s62, 10")
    for i in range(8):
        R = Rec()
        R(f"v_xor_b32 v45, {i<<4}, v44")
        R(f"s_add_u32 m0, s69, {XC+i*1024}")
        R(f"s_add_u32 s61, s62, {((i>>2)*8+(i&3))*1024}")
        R.vm(f"buffer_load_dwordx4 v45, {R5}, s61 offen lds", "xc")
        bg.append(R.l)
    with Drip(bg, 8):
        fft_tables()
    vm.wait("xb")
    A("s_barrier")
    mark("gb_start")
    lph = newlab("ph"); ldone = newlab("p1d")
    A("s_cmp_ge_u32 s52, 56")
    A(f"s_cbranch_scc1 {lph}")
    A("v_lshrrev_b32 v42, 2, v1"); A("v_and_b32 v42, 3, v42")
    A("v_lshl_add_u32 v43, v4, 3, v42"); A("v_lshlrev_b32 v43, 7, v43")
    A("v_and_b32 v41, 16, v1"); A("v_lshl_or_b32 v43, v41, 1, v43")
    A("v_and_b32 v41, 1, v1"); A("v_lshl_or_b32 v43, v41, 4, v43")
    A("v_and_b32 v41, 2, v1"); A("v_lshl_or_b32 v43, v41, 2, v43")
    A("v_lshrrev_b32 v41, 1, v42"); A("v_lshl_or_b32 v43, v41, 6, v43")
    A(f"v_add_u32 v40, {XB}, v43"); A("v_xor_b32 v41, 64, v40")
    order = [(k, dt) for dt in range(2) for i in range(16) for k in (i, i+16)]
    def rdb(n):
        ks, dt = order[n]
        for T in range(2):
            lg.issue(f"ds_read_b64_tr_b16 {v(DFR+(n%8)*4+2*T,2)}, v{40+dt} offset:{(16*ks+4*T)*128}", n)
    A("s_lshl_b32 s56, s55, 17"); A("s_lshl_b32 s57, s53, 12"); A("s_add_u32 s56, s56, s57")
    A("s_lshl_b32 s57, s66, 10"); A("s_add_u32 s56, s56, s57"); A(f"s_add_u32 s56, s56, 0x{W1P:x}")
    A("s_add_u32 s57, s56, 65536")
    def gbepi(dt):
        R = Rec()
        for k in range(0, 16, 2):
            ng = " neg_lo:[0,1] neg_hi:[0,1]" if (k & 2) else ""
            R(f"v_pk_add_f32 {v(AC+32*dt+k,2)}, {v(AC+32*dt+k,2)}, {v(AC+32*dt+16+k,2)}{ng}")
            R(f"v_cvt_pk_bf16_f32 v{64+8*dt+k//2}, v{AC+32*dt+k}, v{AC+32*dt+k+1}")
        R.vm(f"buffer_store_dwordx4 {v(64+8*dt,4)}, v2, {WS}, s{56+dt} offen {ST}", "st")
        R.vm(f"buffer_store_dwordx4 {v(68+8*dt,4)}, v2, {WS}, s{56+dt} offen offset:2048 {ST}", "st")
        return R.l
    for n in range(6): rdb(n)
    cur = []
    for n, (ks, dt) in enumerate(order):
        if n + 6 < 64: rdb(n+6)
        lg.wait(n)
        acc = v(AC+32*dt+16*(ks//16), 16)
        A(f"{MF32} {acc}, {phi(ks)}, {v(DFR+(n%8)*4,4)}, {acc if n % 32 >= 2 else 0}")
        if n == 36: cur = gbepi(0)
        if cur: cur.pop(0)()
    for f in gbepi(1): f()
    A(f"s_branch {ldone}")
    A.label(lph)
    A("s_sub_u32 s56, s54, 896")
    A("s_lshr_b32 s57, s56, 4"); A("s_lshl_b32 s57, s57, 6")
    A("v_add_u32 v40, s57, v5"); A("v_cvt_f32_u32 v40, v40")
    A("s_and_b32 s57, s56, 15"); A("s_lshl_b32 s57, s57, 4")
    A("v_lshl_add_u32 v41, v4, 2, s57")
    A("v_cmp_eq_u32 vcc, 0, v41")
    A("v_cvt_f32_u32 v41, v41")
    A("s_lshl_b32 s56, s56, 12"); A(f"s_add_u32 s56, s56, 0x{W1P+56*65536:x}")
    for aa in range(2):
        for mt in range(2):
            A(f"v_add_f32 v42, {flit(32.0*mt)}, v40")
            A(f"v_mul_f32 v43, {flit(1/512)}, v42")
            A("v_mul_f32 v16, v43, v41")
            for q in range(4):
                A(f"v_fmamk_f32 v{96+2*q}, v43, {flit(8*aa+q)}, v16")
                A(f"v_add_f32 v{97+2*q}, {flit(0.25)}, v{96+2*q}")
            if aa == 0:
                A(f"v_mov_b32 v17, {flit(0.125)}")
                A("v_fma_f32 v18, v42, 0.5, v17")
                A("v_cndmask_b32 v96, v96, v18, vcc")
                A("v_cndmask_b32 v97, v97, v17, vcc")
            for t in range(8): A(f"v_cos_f32 v{96+t}, v{96+t}")
            for t in range(8): A(f"v_mul_f32 v{96+t}, {flit(1/16)}, v{96+t}")
            d = 104 + 4*(aa*2+mt)
            pack(d, 96, 8)
            A(f"buffer_store_dwordx4 {v(d,4)}, v2, {WS}, s56 offen offset:{(aa*2+mt)*1024} {ST}")
    A.label(ldone)
def p1_gc():
    l = newlab("gc")
    A("s_cmp_ge_u32 s52, 56")
    A(f"s_cbranch_scc1 {l}")
    arrive_local(7, "s55", ["xc", "st"])
    mark("gc_start")
    A("v_lshrrev_b32 v42, 2, v1"); A("v_and_b32 v42, 3, v42")
    A("v_lshl_add_u32 v43, v4, 2, v42")
    A("v_lshrrev_b32 v40, 3, v1"); A("v_and_b32 v40, 2, v40")
    A("v_and_b32 v41, 1, v1"); A("v_or_b32 v40, v40, v41")
    A("s_lshl_b32 s56, s53, 2"); A("v_or_b32 v40, s56, v40")
    A("v_xor_b32 v40, v40, v43"); A("v_lshlrev_b32 v40, 4, v40")
    A("v_lshl_add_u32 v40, v43, 10, v40")
    A("v_and_b32 v41, 2, v1"); A("v_lshl_or_b32 v40, v41, 2, v40")
    A("v_xor_b32 v41, 128, v40")
    for kk in range(2):
        lg.issue(f"ds_read_b64_tr_b16 {v(16+4*kk,2)}, v40 offset:{XC+kk*16384}", "wd0")
        lg.issue(f"ds_read_b64_tr_b16 {v(18+4*kk,2)}, v41 offset:{XC+kk*16384+8192}", "wd0")
    R = Rec()
    R("s_lshr_b32 s56, s53, 1"); R(f"s_mul_i32 s56, s56, {112*2048}")
    R("s_lshl_b32 s57, s52, 12"); R("s_add_u32 s56, s56, s57")
    R("s_lshl_b32 s57, s67, 10"); R("s_add_u32 s56, s56, s57")
    R(f"s_add_u32 s57, s56, 0x{WD0:x}"); R(f"s_add_u32 s56, s56, 0x{WDP:x}")
    R(f"buffer_store_dwordx4 v[16:19], v2, {WS}, s57 offen {ST}")
    R(f"buffer_store_dwordx4 v[20:23], v2, {WS}, s57 offen offset:2048 {ST}")
    rowgemm(XC, R.l)
    A(f"buffer_store_dwordx4 v[56:59], v2, {WS}, s56 offen {ST}")
    A(f"buffer_store_dwordx4 v[60:63], v2, {WS}, s56 offen offset:2048 {ST}")
    A("s_waitcnt vmcnt(4)")
    l2 = newlab("gc")
    A(f"s_branch {l2}")
    A.label(l)
    A("s_waitcnt vmcnt(0)")
    A.label(l2)
    vm.q = []

XR, XI, WTV, DR, DI, SSV = 64, 68, 72, 80, 84, 88
XFR, XFI, DFR_, DFI_ = 96, 104, 112, 120
FR, FI, NFI, GR, GI, NGI, TWR, TWI = 128, 136, 144, 152, 160, 168, 176, 184
Z = 192; RE, IM, T = 224, 232, 240; WR, WI, BR, BI = 16, 24, 32, 36
def fft_tables():
    A("v_and_b32 v8, 15, v1")
    A("v_lshrrev_b32 v9, 4, v1")
    A("s_lshl_b32 s56, s3, 4")
    A("v_add_u32 v40, s56, v8"); A("v_cvt_f32_u32 v40, v40")
    A("v_lshlrev_b32 v41, 2, v9"); A("v_cvt_f32_u32 v41, v41")
    def sincos(dc, ds, dns, consts):
        for t in range(8): A(f"v_fmamk_f32 v{T+t}, v42, {flit(consts[t])}, v43")
        for t in range(8): A(f"v_cos_f32 v{RE+t}, v{T+t}")
        for t in range(8): A(f"v_sin_f32 v{IM+t}, v{T+t}")
        pack(dc, RE, 8); pack(dns, IM, 8)
        for k in range(4): A(f"v_xor_b32 v{ds+k}, 0x80008000, v{dns+k}")
    A(f"v_mul_f32 v42, {flit(1/64)}, v40"); A("v_mul_f32 v43, v42, v41")
    for q in range(2): sincos(FR+4*q, FI+4*q, NFI+4*q, [32*q + 16*(t//4) + t%4 for t in range(8)])
    for dt in range(2):
        A(f"v_add_u32 v42, {16*dt}, v8"); A("v_cvt_f32_u32 v42, v42")
        A(f"v_mul_f32 v42, {flit(1/32)}, v42"); A("v_mul_f32 v43, v42, v41")
        sincos(GR+4*dt, GI+4*dt, NGI+4*dt, [16*(t//4) + t%4 for t in range(8)])
    A(f"v_mul_f32 v42, {flit(-1/2048)}, v40"); A("v_mul_f32 v43, v42, v41")
    for t in range(8): A(f"v_fmamk_f32 v{T+t}, v42, {flit(16*(t//4)+t%4)}, v43")
    for t in range(8):
        A(f"v_cos_f32 v{TWR+t}, v{T+t}"); A(f"v_sin_f32 v{TWI+t}, v{T+t}")
    A("s_lshr_b32 s56, s3, 1"); A("s_lshl_b32 s56, s56, 10"); A("s_and_b32 s57, s3, 1"); A("s_lshl_b32 s57, s57, 3")
    A("s_add_u32 s56, s56, s57"); A(f"s_add_u32 s56, s56, {LDS_FFT}")
    A("v_add_u32 v10, s56, v2")
    A("s_lshl_b32 s56, s3, 11"); A(f"s_add_u32 s56, s56, {LDS_FFT+8192}")
    A("v_lshlrev_b32 v11, 5, v8"); A("v_lshl_add_u32 v11, v9, 3, v11"); A("v_add_u32 v11, s56, v11")
    A("v_lshlrev_b32 v12, 3, v1"); A(f"v_add_u32 v12, {LDS_FFT+8192}, v12")
    A(f"v_add_u32 v13, {LDS_FFT}, v2")
    A("v_lshlrev_b32 v15, 5, v1")
    A("s_lshl_b32 s58, s2, 13"); A("s_lshl_b32 s59, s3, 10"); A("s_add_u32 s58, s58, s59"); A("s_lshl_b32 s59, s3, 11")
def fft_static_loads():
    A("s_lshl_b32 s60, s2, 13"); A("s_lshl_b32 s61, s3, 10"); A("s_add_u32 s60, s60, s61"); A("s_add_u32 s61, s61, s60")
    A(f"s_add_u32 s61, s61, 0x{WT:x}")
    if XH0: A(f"s_add_u32 s60, s60, 0x{XH0:x}")
    vm.issue(f"buffer_load_dwordx4 {v(XR,4)}, v2, {WS}, s60 offen {LD}", "fx")
    A("s_add_u32 s60, s60, 4096")
    A("s_cmp_eq_u32 s2, 0"); A(f"s_cselect_b32 s60, 0x{WS_SZ:x}, s60")
    vm.issue(f"buffer_load_dwordx4 {v(XI,4)}, v2, {WS}, s60 offen {LD}", "fx")
    vm.issue(f"buffer_load_dwordx4 {v(WTV,4)}, v2, {WS}, s61 offen {LD}", "fx")
    vm.issue(f"buffer_load_dwordx4 {v(WTV+4,4)}, v2, {WS}, s61 offen offset:1024 {LD}", "fx")
def fft_unpack_static():
    unpack(XFR, XR, 8); unpack(XFI, XI, 8)
    for k in range(8):
        A(f"v_lshlrev_b32 v{WR+k}, 16, v{WTV+k}"); A(f"v_and_b32 v{WI+k}, 0xffff0000, v{WTV+k}")
def fft(L, after_loads=None, bg=[], mid=None):
    ss, dprev, dout, aout = [(SS0, None, D1, A1), (SS2, D2, D3, A3)][L]
    A(f"s_add_u32 s56, s59, 0x{ss:x}")
    if L:
        A(f"s_add_u32 s60, s58, 0x{dprev:x}"); A("s_add_u32 s61, s60, 4096")
        vm.issue(f"buffer_load_dwordx4 {v(DR,4)}, v2, {WS}, s60 offen {LD}", "fx")
        vm.issue(f"buffer_load_dwordx4 {v(DI,4)}, v2, {WS}, s61 offen {LD}", "fx")
    vm.issue(f"buffer_load_dwordx4 {v(SSV,4)}, v15, {WS}, s56 offen {LD}", "fx")
    vm.issue(f"buffer_load_dwordx4 {v(SSV+4,4)}, v15, {WS}, s56 offen offset:16 {LD}", "fx")
    if L == 0: fft_static_loads()
    if after_loads: after_loads()
    A(f"s_mov_b32 s56, {flit(2048.0*2048.0/512)}")
    A(f"v_mov_b32 v{T}, {flit(1e-5*2048.0*2048.0)}")
    A("s_cmp_eq_u32 s2, 0"); A("s_cselect_b32 s66, 0, 1.0")
    A(f"s_add_u32 s68, s58, 0x{aout:x}"); A("s_add_u32 s69, s68, 4096")
    A(f"s_add_u32 s60, s58, 0x{dout:x}"); A("s_add_u32 s61, s60, 4096")
    vm.wait("fx")
    mark(f"fft{L}_data")
    for k in range(8): A(f"v_fma_f32 v{SSV+k}, v{SSV+k}, s56, v{T}")
    for k in range(8): A(f"v_rsq_f32 v{SSV+k}, v{SSV+k}")
    if L == 0:
        unpack(XFR, XR, 8); unpack(XFI, XI, 8)
    else:
        unpack(DFR_, DR, 8); unpack(DFI_, DI, 8)
        for k in range(0, 8, 2):
            A(f"v_pk_add_f32 {v(XFR+k,2)}, {v(XFR+k,2)}, {v(DFR_+k,2)}")
            A(f"v_pk_fma_f32 {v(XFI+k,2)}, {v(DFI_+k,2)}, s[66:67], {v(XFI+k,2)} op_sel_hi:[1,0,1]")
    for part, (src, tmp, dst) in enumerate(((XFR, RE, BR), (XFI, IM, BI))):
        for t in range(2):
            for k in (4*t, 4*t+2): A(f"v_pk_mul_f32 {v(tmp+k,2)}, {v(src+k,2)}, {v(SSV+k,2)}")
            pack(dst+2*t, tmp+4*t, 4)
            A(f"ds_write_b64 v10, {v(dst+2*t,2)} offset:{(part*2+t)*2048}")
    if L == 0:
        for k in range(8):
            A(f"v_lshlrev_b32 v{WR+k}, 16, v{WTV+k}"); A(f"v_and_b32 v{WI+k}, 0xffff0000, v{WTV+k}")
    A("s_waitcnt lgkmcnt(0)")
    A("s_barrier")
    zf = lambda part, t, q: Z + ((part*2+t)*2+q)*4
    for t in range(2):
        for q in range(2):
            for part in range(2):
                A(f"ds_read_b128 {v(zf(part,t,q),4)}, v13 offset:{((part*2+t)*2+q)*1024}")
    def half(t, br, bi, conj):
        cmul(RE, IM, RE, IM, br, bi, T, conj, 4*t, 4*t+4)
        pack(BR+2*t, RE+4*t, 4); pack(BI+2*t, IM+4*t, 4)
    with Drip(bg, 4):
        for t in range(2):
            for q in range(2):
                A(f"s_waitcnt lgkmcnt({6-(t*2+q)*2})")
                re, im = v(RE+4*t,4), v(IM+4*t,4)
                A(f"{MF16} {re}, {v(zf(0,t,q),4)}, {v(FR+4*q,4)}, {re if q else 0}")
                A(f"{MF16} {im}, {v(zf(0,t,q),4)}, {v(FI+4*q,4)}, {im if q else 0}")
                A(f"{MF16} {re}, {v(zf(1,t,q),4)}, {v(NFI+4*q,4)}, {re}")
                A(f"{MF16} {im}, {v(zf(1,t,q),4)}, {v(FR+4*q,4)}, {im}")
        half(0, TWR, TWI, False); half(1, TWR, TWI, False)
        for dt in range(2):
            re, im = v(RE+4*dt,4), v(IM+4*dt,4)
            A(f"{MF16} {re}, {v(GR+4*dt,4)}, {v(BR,4)}, 0")
            A(f"{MF16} {im}, {v(GI+4*dt,4)}, {v(BR,4)}, 0")
            A(f"{MF16} {re}, {v(NGI+4*dt,4)}, {v(BI,4)}, {re}")
            A(f"{MF16} {im}, {v(GR+4*dt,4)}, {v(BI,4)}, {im}")
        half(0, WR, WI, False); half(1, WR, WI, False)
        for bt in range(2):
            re, im = v(RE+4*bt,4), v(IM+4*bt,4)
            A(f"{MF16} {re}, {v(GR+4*bt,4)}, {v(BR,4)}, 0")
            A(f"{MF16} {im}, {v(NGI+4*bt,4)}, {v(BR,4)}, 0")
            A(f"{MF16} {re}, {v(GI+4*bt,4)}, {v(BI,4)}, {re}")
            A(f"{MF16} {im}, {v(GR+4*bt,4)}, {v(BI,4)}, {im}")
        for t in range(2):
            half(t, TWR, TWI, True)
            A(f"ds_write_b64 v11, {v(BR+2*t,2)} offset:{(t*2)*512}")
            A(f"ds_write_b64 v11, {v(BI+2*t,2)} offset:{(t*2+1)*512}")
    A("s_waitcnt lgkmcnt(0)")
    A("s_barrier")
    for t in range(2):
        for q in range(2):
            for part in range(2):
                for hf in range(2):
                    A(f"ds_read_b64_tr_b16 {v(zf(part,t,q)+2*hf,2)}, v12 offset:{(((2*q+hf)*2+t)*2+part)*512}")
    if mid: mid()
    for t in range(2):
        for q in range(2):
            A(f"s_waitcnt lgkmcnt({12-(t*2+q)*4})")
            re, im = v(RE+4*t,4), v(IM+4*t,4)
            A(f"{MF16} {re}, {v(FR+4*q,4)}, {v(zf(0,t,q),4)}, {re if q else 0}")
            A(f"{MF16} {im}, {v(NFI+4*q,4)}, {v(zf(0,t,q),4)}, {im if q else 0}")
            A(f"{MF16} {re}, {v(FI+4*q,4)}, {v(zf(1,t,q),4)}, {re}")
            A(f"{MF16} {im}, {v(FR+4*q,4)}, {v(zf(1,t,q),4)}, {im}")
    for t in range(2):
        for k in (4*t, 4*t+2):
            A(f"v_pk_add_f32 {v(XFR+k,2)}, {v(XFR+k,2)}, {v(RE+k,2)}")
            A(f"v_pk_fma_f32 {v(XFI+k,2)}, {v(IM+k,2)}, s[66:67], {v(XFI+k,2)} op_sel_hi:[1,0,1]")
        pack(XR+2*t, XFR+4*t, 4); pack(XI+2*t, XFI+4*t, 4)
    vm.issue(f"buffer_store_dwordx4 {v(XR,4)}, v2, {WS}, s68 offen {ST}", "st")
    vm.issue(f"buffer_store_dwordx4 {v(XI,4)}, v2, {WS}, s69 offen {ST}", "st")
    for k in range(0, 8, 2):
        if L:
            A(f"v_pk_add_f32 {v(RE+k,2)}, {v(DFR_+k,2)}, {v(RE+k,2)}")
            A(f"v_pk_fma_f32 {v(IM+k,2)}, {v(IM+k,2)}, s[66:67], {v(DFI_+k,2)} op_sel_hi:[1,0,1]")
        else:
            A(f"v_pk_mul_f32 {v(IM+k,2)}, {v(IM+k,2)}, s[66:67] op_sel_hi:[1,0]")
    pack(DR, RE, 8); pack(DI, IM, 8)
    vm.issue(f"buffer_store_dwordx4 {v(DR,4)}, v2, {WS}, s60 offen {ST}", "st")
    vm.issue(f"buffer_store_dwordx4 {v(DI,4)}, v2, {WS}, s61 offen {ST}", "st")

def roles():
    A("s_and_b32 s52, s2, 3"); A("s_lshl_b32 s52, s52, 2"); A("s_lshr_b32 s56, s2, 3"); A("s_and_b32 s56, s56, 3"); A("s_add_u32 s52, s52, s56")
    A("s_and_b32 s53, s2, 4"); A("s_lshl_b32 s53, s53, 1"); A("s_lshr_b32 s56, s2, 5"); A("s_add_u32 s53, s53, s56")
    A("s_and_b32 s55, s2, 7"); A("s_lshl_b32 s55, s55, 2"); A("s_lshr_b32 s56, s2, 3"); A("s_and_b32 s56, s56, 3"); A("s_add_u32 s55, s55, s56")
    A("s_lshr_b32 s54, s2, 5")
def wreg(i):
    if i < 8: return v(96+4*i, 4)
    return a(4*(i-8), 4)
def a_loads(c, E, iss):
    for i in range(8):
        if i % 4 == 0: E(f"s_add_u32 s63, s62, {c*8192 + (i//4)*4096}")
        iss(f"buffer_load_dwordx4 {a(c*32+i*4,4)}, v2, {WS}, s63 offen offset:{(i%4)*1024} {LD}", ("a", c))
def a_base():
    A("s_lshl_b32 s62, s52, 2"); A("s_add_u32 s62, s62, s3"); A("s_lshl_b32 s62, s62, 16"); A(f"s_add_u32 s62, s62, 0x{W1P:x}")
def w_setup(L):
    A(f"s_mul_i32 s64, s54, {112*2048}"); A(f"s_mul_i32 s65, s3, {28*2048}"); A("s_add_u32 s64, s64, s65")
    A(f"s_add_u32 s64, s64, 0x{(WDP, WD0)[L]:x}")
    if L == 0: A("s_and_b32 s65, s3, 1")
    else: A("s_lshr_b32 s65, s3, 1")
    A("s_lshl_b32 s65, s65, 10")
    A("v_add_u32 v62, s65, v2"); A("v_xor_b32 v63, 1024, v62")
def w_loads(lo, hi, E, iss):
    for i in range(lo, hi):
        st, t = i // 2, i % 2
        if i % 4 == 0: E(f"s_add_u32 s65, s64, {st*2048}")
        iss(f"buffer_load_dwordx4 {wreg(i)}, v{62+t}, {WS}, s65 offen offset:{(st%2)*2048} {LD}", "w")
def gemm1_pre(L):
    A("v_lshrrev_b32 v40, 4, v1"); A("v_and_b32 v41, 15, v1"); A("v_lshlrev_b32 v42, 2, v40"); A("v_xor_b32 v41, v41, v42")
    A("v_lshlrev_b32 v41, 4, v41"); A("v_lshl_add_u32 v13, v40, 12, v41")
    A("v_lshrrev_b32 v40, 2, v1"); A("v_and_b32 v40, 3, v40")
    A("v_lshl_add_u32 v41, v4, 3, v40"); A("v_lshlrev_b32 v41, 8, v41")
    A("v_and_b32 v42, 16, v1"); A("v_lshl_or_b32 v41, v42, 1, v41")
    A("v_and_b32 v42, 1, v1"); A("v_lshl_or_b32 v41, v42, 4, v41")
    A("v_and_b32 v42, 2, v1"); A("v_lshl_or_b32 v41, v42, 2, v41")
    A("v_xor_b32 v40, s3, v40"); A("v_lshl_or_b32 v8, v40, 6, v41")
    for k in range(1, 4): A(f"v_xor_b32 v{8+k}, {k<<6}, v8")
    A("s_lshl_b32 s56, s52, 12"); A("v_add_u32 v12, s56, v8")
    a_base()
    w_setup(L)
    A("s_lshl_b32 s58, s3, 16"); A("s_lshl_b32 s59, s53, 8"); A("s_add_u32 s58, s58, s59")
    if L == 0: A(f"s_add_u32 s58, s58, 0x{A1:x}")
    else:
        A(f"s_mov_b32 s56, 0x{A3:x}"); A(f"s_mov_b32 s57, 0x{D3:x}")
        A("s_cmp_ge_u32 s52, 14"); A("s_cselect_b32 s56, s57, s56"); A("s_add_u32 s58, s58, s56")
    A("s_lshl_b32 s59, s3, 12")
def gemm1(L, NPRE):
    ACC, BF = 128, 64
    Hb = (H, H2)[L]; SSo = (SS1, SS3)[L]
    lidle = newlab("idle"); lend = newlab("g1e")
    if L == 0:
        A("s_cmp_ge_u32 s52, 14"); A(f"s_cbranch_scc1 {lidle}")
    def b_loads(c, E, iss):
        for k in range(4):
            E(f"s_add_u32 m0, s59, {(64*c+4*k)*256}")
            E(f"s_add_u32 s60, s58, {(64*c+4*k)*4096}")
            iss(f"buffer_load_dwordx4 v13, {WS}, s60 offen {LD} lds", ("b", c))
    b_loads(0, A, vm.issue)
    if NPRE < 1: a_loads(0, A, vm.issue)
    b_loads(1, A, vm.issue)
    if NPRE < 2: a_loads(1, A, vm.issue)
    fill = {ks: Rec() for ks in range(32)}
    stream = []
    def split(fn, *args):
        R = Rec(); marks = []
        def iss(t, tag): R.vm(t, tag); marks.append(len(R.l))
        fn(*args, R, iss)
        p = 0
        for m in marks: stream.append(R.l[p:m]); p = m
    for c in range(2, 8):
        split(b_loads, c)
        if c >= NPRE: split(a_loads, c)
    nab = len(stream)
    split(w_loads, 0, 56)
    RATE = [4]*8 + [3]*20 if NPRE < 8 else [3]*28
    pos = 0
    for ks in range(28):
        for _ in range(RATE[ks]):
            if pos >= len(stream): break
            wi = pos - nab
            if wi >= 8 and ks < 4*((wi-8)//8) + 4: break
            fill[ks].l += stream[pos]; pos += 1
    rest = stream[pos:]
    assert pos >= nab
    blast = max(ks for ks in range(28) if any(True for f in fill[ks].l) and sum(RATE[:ks]) < nab)
    BALL = {0: 23, 4: 19, 8: 11}[NPRE]
    for n, ks in enumerate((BALL+1, BALL+2, BALL+3)):
        R = fill[ks]
        if n == 2:
            R("s_cmp_lt_u32 s52, 4"); R("s_cselect_b32 s56, 0x1c000, 0"); R("s_cselect_b32 s57, -1, 0")
            R("v_add_u32 v12, s56, v12")
        R.lg(f"ds_read_b64_tr_b16 v[16:17], v12 offset:{14*4096 if n == 1 else 0}", "ss")
        R.lg(f"ds_read_b64_tr_b16 v[18:19], v12 offset:{(14*4096 if n == 1 else 0)+1024}", "ss")
        R.lgwait("ss")
        for k in range(4):
            if n == 2: R(f"v_and_b32 v{16+k}, s57, v{16+k}")
            R(f"v_lshlrev_b32 v20, 16, v{16+k}"); R(f"v_and_b32 v21, 0xffff0000, v{16+k}")
            if n == 0 and k == 0:
                R("v_mul_f32 v22, v20, v20"); R("v_mul_f32 v23, v21, v21")
            else:
                R("v_fmac_f32 v22, v20, v20"); R("v_fmac_f32 v23, v21, v21")
    R = fill[BALL+4]
    R("v_add_f32 v22, v22, v23"); R("v_mov_b32 v23, v22"); R("v_lshlrev_b32 v20, 2, v5")
    R("s_lshl_b32 s56, s53, 9"); R("s_lshl_b32 s57, s3, 7"); R("s_add_u32 s56, s56, s57"); R(f"s_add_u32 s56, s56, 0x{SSo:x}")
    R("v_permlane32_swap_b32 v22, v23"); R("v_add_f32 v22, v22, v23")
    if L:
        R("s_cmp_ge_u32 s52, 14"); R(f"s_cselect_b32 s56, 0x{WS_SZ:x}, s56")
    def atom():
        A("s_mov_b32 exec_hi, 0")
        vm.issue(f"buffer_atomic_add_f32 v22, v20, {WS}, s56 offen sc1", "st")
        A("s_mov_b32 exec_hi, -1")
    R.l.append(atom)
    steps = [(ks, ntl) for ks in range(28) for ntl in range(4)] + [(ks, ntl) for ntl in range(4) for ks in range(28, 32)]
    NB = 8
    def rd(n, T):
        ks, ntl = steps[n]
        lg.issue(f"ds_read_b64_tr_b16 {v(BF+(n%NB)*4+2*T,2)}, v{8+ntl} offset:{(ks%16)*4096+T*1024}", ("B", n))
    def epi(ntl):
        R = Rec()
        g, u = ACC+ntl*16, ACC+(4+ntl)*16
        o = 24 + 16*(ntl % 2)
        lx = None
        R(f"s_xor_b32 s56, s3, {ntl}")
        if L == 0:
            mlp = True
        R2_ = Rec()
        for k in range(0, 16, 2):
            R2_(f"v_max_f32 v{g+k}, 0, v{g+k}"); R2_(f"v_max_f32 v{g+k+1}, 0, v{g+k+1}")
            R2_(f"v_mul_f32 v{u+k}, v{u+k}, v{g+k}"); R2_(f"v_mul_f32 v{u+k+1}, v{u+k+1}, v{g+k+1}")
            R2_(f"v_cvt_pk_bf16_f32 v{o+k//2}, v{u+k}, v{u+k+1}")
        R("s_lshr_b32 s57, s56, 1"); R("s_lshl_b32 s60, s53, 1"); R("s_add_u32 s57, s57, s60"); R("s_mul_i32 s57, s57, 229376")
        R("s_and_b32 s56, s56, 1"); R("s_lshl_b32 s56, s56, 10"); R("s_add_u32 s57, s57, s56"); R("s_add_u32 s57, s57, s61")
        R.l += R2_.l
        R.vm(f"buffer_store_dwordx4 {v(o,4)}, v2, {WS}, s57 offen {ST}", "st")
        R.vm(f"buffer_store_dwordx4 {v(o+4,4)}, v2, {WS}, s57 offen offset:2048 {ST}", "st")
        return R
    def epi_x3(ntl):
        R = Rec()
        o = 24 + 16*(ntl % 2)
        R(f"s_xor_b32 s56, s3, {ntl}"); R("s_lshl_b32 s56, s56, 15"); R("s_add_u32 s57, s56, s61")
        for mt in range(2):
            for k in range(8): R(f"v_cvt_pk_bf16_f32 v{o+8*mt+k}, v{ACC+(mt*4+ntl)*16+2*k}, v{ACC+(mt*4+ntl)*16+2*k+1}")
        for k in range(4): R.vm(f"buffer_store_dwordx4 {v(o+4*k,4)}, v2, {WS}, s57 offen offset:{k*1024} {ST}", "st")
        return R
    vm.wait(("b", 0))
    A("s_barrier")
    mark(f"g1{'ab'[L]}_first")
    PRE = 4
    for n in range(PRE): rd(n, 0); rd(n, 1)
    def run(lo, hi, epif):
        cur = []
        for n in range(lo, hi):
            ks, ntl = steps[n]
            c = ks // 4
            if n < 112 and ntl == 0:
                cur = list(fill[ks].l)
                per = (len(cur) + 7)//8
                if ks % 4 == 0: vm.wait(("a", c))
                if ks % 4 == 3 and ks < BALL:
                    vm.wait(("b", c+1)); A("s_barrier")
                if ks == BALL:
                    vm.wait([("b", cc) for cc in range(8)]); A("s_barrier")
                if ks == 15:
                    for k in range(4): A(f"v_add_u32 v{8+k}, 0x10000, v{8+k}")
            if n == 112: vm.wait(("a", 7)); cur = []; per = 0
            if n >= 112 and ks == 28 and ntl > 0:
                cur = cur + epif(ntl-1).l; per = -1
            lg.wait(("B", n))
            b = v(BF+(n%NB)*4, 4)
            for mt in range(2):
                acc = v(ACC+(mt*4+ntl)*16, 16)
                A(f"{MF32} {acc}, {a(c*32+(ks%4)*8+mt*4,4)}, {b}, {acc if ks else 0}")
                if n + PRE < len(steps): rd(n+PRE, mt)
                k = per if per >= 0 else (0 if (ks == 28 and mt == 0) else 7)
                for _ in range(k):
                    if cur: cur.pop(0)()
        for f in cur: f()
    run(0, 112, None)
    A("s_lshl_b32 s61, s52, 2"); A("s_add_u32 s61, s61, s3")
    if L:
        lx3 = newlab("x3")
        A("s_cmp_ge_u32 s52, 14"); A(f"s_cbranch_scc1 {lx3}")
    A("s_lshl_b32 s61, s61, 12"); A(f"s_add_u32 s61, s61, 0x{Hb:x}")
    sv, sl = list(vm.q), list(lg.q)
    run(112, 128, epi)
    for f in epi(3).l: f()
    if L:
        A(f"s_branch {lend}")
        A.label(lx3)
        vm.q, lg.q = sv, sl
        A("s_sub_u32 s61, s61, 56"); A("s_lshl_b32 s61, s61, 12"); A("s_lshl_b32 s56, s53, 17"); A("s_add_u32 s61, s61, s56")
        A(f"s_add_u32 s61, s61, 0x{X3D:x}")
        run(112, 128, epi_x3)
        for f in epi_x3(3).l: f()
        A.label(lend)
        mark("g1b_done")
        arrive_local(6, "s53")
        mark("arr6")
        for r in rest:
            for f in r: f()
    else:
        mark("g1a_done")
        arrive_local(3, "s53")
        mark("arr3")
        for r in rest:
            for f in r: f()
        A(f"s_branch {lend}")
        A.label(lidle)
        w_loads(0, 56, A, lambda t, tag: A(t))
        A.label(lend)
    vm.q = []

def hreg(i):
    i %= 32
    return a(192+4*i, 4) if i < 16 else v(128+4*(i-16), 4)
def gemm2_pre(L):
    Hb = (H, H2)[L]
    A(f"s_mul_i32 s58, s55, 229376"); A(f"s_mul_i32 s59, s3, {28*2048}"); A("s_add_u32 s58, s58, s59"); A(f"s_add_u32 s58, s58, 0x{Hb:x}")
    A("s_lshr_b32 s66, s3, 1")
    A("s_and_b32 s67, s3, 1")
    A(f"s_lshl_b32 s59, s{66+L}, 10")
    A("v_add_u32 v8, s59, v2"); A("v_xor_b32 v9, 1024, v8")
    A("s_lshr_b32 s68, s55, 1")
    if L == 0:
        A("s_lshl_b32 s56, s54, 6"); A("s_lshl_b32 s57, s67, 5"); A("s_add_u32 s56, s56, s57")
        A("v_add_u32 v12, s56, v5")
        A("v_lshlrev_b32 v13, 12, v12"); A("v_lshl_add_u32 v13, v4, 4, v13")
        A("s_lshl_b32 s69, s55, 7"); A("s_lshl_b32 s57, s66, 6"); A("s_add_u32 s69, s69, s57")
        A("v_lshlrev_b32 v14, 5, v4")
        A("v_and_b32 v15, 15, v5"); A("v_add_u32 v15, s56, v15"); A("v_lshlrev_b32 v15, 12, v15"); A("v_lshl_add_u32 v15, v4, 4, v15")
        A("v_and_b32 v11, 16, v1"); A("v_lshl_add_u32 v15, v11, 1, v15")
    else:
        A("v_and_b32 v12, 3, v5"); A("v_lshlrev_b32 v12, 5, v12"); A("v_and_b32 v13, 4, v5"); A("v_lshl_or_b32 v12, v13, 2, v12")
        A("v_lshrrev_b32 v13, 3, v5"); A("v_or_b32 v12, v12, v13")
        A("v_lshlrev_b32 v13, 10, v12"); A("v_lshl_add_u32 v13, v4, 4, v13")
        A("s_lshr_b32 s69, s55, 1"); A("s_lshl_b32 s69, s69, 7"); A("s_and_b32 s57, s55, 1"); A("s_lshl_b32 s57, s57, 3"); A("s_add_u32 s69, s69, s57")
        A("s_lshl_b32 s57, s67, 2"); A("s_add_u32 s69, s69, s57"); A("s_lshl_b32 s69, s69, 10")
        A("s_lshl_b32 s57, s54, 7"); A("s_add_u32 s69, s69, s57"); A("s_lshl_b32 s57, s66, 6"); A("s_add_u32 s69, s69, s57")
        A("v_lshlrev_b32 v14, 2, v5")
        A("v_and_b32 v15, 0xfffff7ff, v13"); A("v_and_b32 v11, 16, v1"); A("v_lshl_add_u32 v15, v11, 1, v15")
        srd(A, 32, 18, 0, 2*MB)
G2ACC, G2TMP, PRE = 192, 128, 16
EX, ED, SQ = 96, 112, 48
def gemm2_static(L):
    if L == 0:
        A(f"s_add_u32 s56, s69, 0x{XH0:x}"); A(f"s_add_u32 s57, s69, 0x{D1:x}")
        vm.issue(f"buffer_load_dwordx4 {v(PRE,4)}, v13, {WS}, s56 offen {LD}", "pre")
        vm.issue(f"buffer_load_dwordx4 {v(PRE+4,4)}, v13, {WS}, s56 offen offset:32 {LD}", "pre")
        vm.issue(f"buffer_load_dwordx4 {v(PRE+8,4)}, v13, {WS}, s57 offen {LD}", "pre")
        vm.issue(f"buffer_load_dwordx4 {v(PRE+12,4)}, v13, {WS}, s57 offen offset:32 {LD}", "pre")
        fft_static_loads()
    else:
        vm.issue(f"buffer_load_dwordx4 {v(PRE,4)}, v13, {SX}, s69 offen", "pre")
        vm.issue(f"buffer_load_dwordx4 {v(PRE+4,4)}, v13, {SX}, s69 offen offset:32", "pre")
def gemm2(L):
    ACC, TMP = G2ACC, G2TMP
    PD = 7
    def hld(st, t):
        if st % 2 == 0 and t == 0: A(f"s_add_u32 s59, s58, {st*2048}")
        vm.issue(f"buffer_load_dwordx4 {hreg(2*st+t)}, v{8+t}, {WS}, s59 offen offset:{(st%2)*2048} {LD}", ("h", st))
    for st in range(PD): hld(st, 0); hld(st, 1)
    mark(f"g2{'ab'[L]}_issued")
    R = Rec()
    if L == 0:
        R("s_lshl_b32 s56, s69, 1"); R(f"s_add_u32 s56, s56, 0x{SS1:x}")
        for k in range(4):
            R.vm(f"buffer_load_dwordx4 {v(PRE+16+4*k,4)}, v14, {WS}, s56 offen offset:{(k//2)*64+(k%2)*16} {LD}", "pre")
        for k in range(16): R(f"v_mov_b32 v{SQ+k}, 0")
        R("v_cmp_ne_u32 s[60:61], 1, v12")
    else:
        R("s_lshl_b32 s56, s55, 8"); R("s_lshl_b32 s57, s67, 7"); R("s_add_u32 s56, s56, s57"); R(f"s_add_u32 s56, s56, 0x{SS3:x}")
        R.vm(f"buffer_load_dword v{PRE+16}, v14, {WS}, s56 offen {LD}", "pre")
        R("s_lshl_b32 s56, s55, 1"); R("s_add_u32 s56, s56, s67"); R("s_lshl_b32 s56, s56, 4"); R("s_lshl_b32 s57, s54, 1")
        R("s_add_u32 s56, s56, s57"); R("s_add_u32 s56, s56, s66"); R("s_lshl_b32 s56, s56, 11"); R(f"s_add_u32 s56, s56, 0x{X3D:x}")
        R.vm(f"buffer_load_dwordx4 {v(PRE+8,4)}, v2, {WS}, s56 offen {LD}", "pre")
        R.vm(f"buffer_load_dwordx4 {v(PRE+12,4)}, v2, {WS}, s56 offen offset:1024 {LD}", "pre")
    R2_ = Rec()
    R2_.vmwait("pre")
    R2_(f"s_mov_b32 s56, {flit(1/512)}"); R2_(f"v_mov_b32 v11, {flit(1e-5)}")
    nr = 16 if L == 0 else 1
    for k in range(nr): R2_(f"v_fma_f32 v{PRE+16+k}, v{PRE+16+k}, s56, v11")
    for k in range(nr): R2_(f"v_rcp_f32 v{PRE+16+k}, v{PRE+16+k}")
    for k in range(8):
        R2_(f"v_lshlrev_b32 v{EX+2*k}, 16, v{PRE+k}"); R2_(f"v_and_b32 v{EX+2*k+1}, 0xffff0000, v{PRE+k}")
        R2_(f"v_lshlrev_b32 v{ED+2*k}, 16, v{PRE+8+k}"); R2_(f"v_and_b32 v{ED+2*k+1}, 0xffff0000, v{PRE+8+k}")
    if L:
        for k in range(16): R2_(f"v_add_f32 v{ED+k}, v{ED+k}, v{EX+k}")
    for q in (1, 2, 3):
        R2_(f"s_xor_b32 s56, s3, {q}"); R2_("s_mul_i32 s56, s56, 12288"); R2_(f"s_add_u32 s56, s56, {(q-1)*4096}")
        R2_(f"v_add_u32 v{79+q}, s56, v2")
    R2_("s_mul_i32 s56, s3, 12288"); R2_("v_add_u32 v83, s56, v2")
    if L == 0:
        R2_(f"s_add_u32 s62, s69, 0x{D2:x}"); R2_("s_add_u32 s63, s62, 65536")
        R2_("v_and_b32 v84, 16, v1"); R2_("v_lshl_or_b32 v84, v4, 3, v84")
        R2_("v_lshrrev_b32 v85, 1, v1"); R2_("v_and_b32 v85, 6, v85"); R2_("v_or_b32 v84, v84, v85")
        R2_("v_and_b32 v85, 1, v1"); R2_("v_or_b32 v84, v84, v85"); R2_("v_lshlrev_b32 v84, 2, v84")
        R2_("v_cmp_eq_u32 s[64:65], 1, v85")
        R2_("s_lshl_b32 s57, s69, 1"); R2_(f"s_add_u32 s57, s57, 0x{SS2:x}")
    NT = 3
    seq = [(st, q) for st in range(28-NT) for q in range(4)] + [(st, q) for q in (1, 2, 3, 0) for st in range(28-NT, 28)]
    cur = list(R.l); waited = set()
    hq = [(x, t) for x in range(PD, 28) for t in range(2)]
    for n, (st, q) in enumerate(seq):
        t1, t2 = q >> 1, q & 1
        if st not in waited:
            vm.wait(("h", st)); waited.add(st)
            if st == 0: mark(f"g2{'ab'[L]}_first")
        if n == 4*10: cur += R2_.l
        acc = v(ACC+q*16, 16)
        if L == 0: aa, bb = hreg(2*st+t1), wreg(2*st+t2)
        else: aa, bb = wreg(2*st+t1), hreg(2*st+t2)
        A(f"{MF32} {acc}, {aa}, {bb}, {acc if st else 0}")
        if n < 4*(28-NT):
            if q < 3 and hq and hq[0][0] < st + 15: hld(*hq.pop(0))
            for _ in range(2 if q < 3 else 3):
                if cur: cur.pop(0)()
        else:
            m = n - 4*(28-NT)
            pq = m // NT
            if pq >= 1 and m % NT >= 1:
                wq = pq
                for k in ((0, 1) if m % NT == 1 else (2, 3)):
                    A(f"ds_write_b128 v{79+wq}, {v(ACC+16*wq+4*k,4)} offset:{k*1024}")
    assert not cur
    mark(f"g2{'ab'[L]}_mm")
    A("s_waitcnt lgkmcnt(0)")
    A("s_barrier")
    for q in range(3):
        for k in range(4): A(f"ds_read_b128 {v(TMP+16*q+4*k,4)}, v83 offset:{q*4096+k*1024}")
    for q in range(3):
        for hh in range(2):
            A(f"s_waitcnt lgkmcnt({10-4*q-2*hh})")
            for k in range(8*hh, 8*hh+8, 2): A(f"v_pk_add_f32 {v(ACC+k,2)}, {v(ACC+k,2)}, {v(TMP+16*q+k,2)}")
    mark(f"g2{'ab'[L]}_red")
    if L == 0:
        for k in range(0, 16, 2): A(f"v_pk_fma_f32 {v(ACC+k,2)}, {v(ACC+k,2)}, {v(PRE+16+k,2)}, {v(ED+k,2)}")
        for k in range(0, 16, 2): A(f"v_pk_add_f32 {v(EX+k,2)}, {v(EX+k,2)}, {v(ACC+k,2)}")
        A("s_mov_b64 exec, s[60:61]")
        for k in range(0, 16, 2): A(f"v_pk_mul_f32 {v(SQ+k,2)}, {v(EX+k,2)}, {v(EX+k,2)}")
        A("s_mov_b64 exec, -1")
        for k in range(8): A(f"v_permlane16_swap_b32 v{SQ+k}, v{SQ+8+k}")
        for k in range(0, 8, 2): A(f"v_pk_add_f32 {v(SQ+k,2)}, {v(SQ+k,2)}, {v(SQ+8+k,2)}")
        d = SQ + 8
        for k in range(4):
            A(f"v_add_f32_dpp v{d+k}, v{SQ+k}, v{SQ+k} row_ror:8 row_mask:0xf bank_mask:0x3")
            A(f"v_add_f32_dpp v{d+k}, v{SQ+4+k}, v{SQ+4+k} row_ror:8 row_mask:0xf bank_mask:0xc")
        for k in range(2):
            A(f"v_add_f32_dpp v{SQ+k}, v{d+k}, v{d+k} row_half_mirror row_mask:0xf bank_mask:0x5")
            A(f"v_add_f32_dpp v{SQ+k}, v{d+2+k}, v{d+2+k} row_half_mirror row_mask:0xf bank_mask:0xa")
        for qp in ("[1,0,3,2]", "[2,3,0,1]"):
            for k in range(2): A(f"v_add_f32_dpp v{SQ+k}, v{SQ+k}, v{SQ+k} quad_perm:{qp} row_mask:0xf bank_mask:0xf")
        A(f"v_cndmask_b32 v{SQ}, v{SQ}, v{SQ+1}, s[64:65]")
        A("s_mov_b32 exec_lo, 0x33333333"); A("s_mov_b32 exec_hi, 0x33333333")
        vm.issue(f"buffer_atomic_add_f32 v{SQ}, v84, {WS}, s57 offen sc1", "st")
        A("s_mov_b64 exec, -1")
        pack(PRE, ACC, 16)
        swap64(PRE)
        vm.issue(f"buffer_store_dwordx4 {v(PRE,4)}, v15, {WS}, s62 offen {ST}", "st")
        vm.issue(f"buffer_store_dwordx4 {v(PRE+4,4)}, v15, {WS}, s63 offen {ST}", "st")
    else:
        for k in range(0, 16, 2): A(f"v_pk_fma_f32 {v(ACC+k,2)}, {v(ACC+k,2)}, {v(PRE+16,2)}, {v(ED+k,2)} op_sel_hi:[1,0,1]")
        pack(PRE, ACC, 16)
        swap64(PRE)
        A(f"buffer_store_dwordx4 {v(PRE,4)}, v15, {R2}, s69 offen")
        A(f"buffer_store_dwordx4 {v(PRE+4,4)}, v15, {R2}, s69 offen offset:2048")

def main(path):
    entry(A, KN)
    A("s_cmp_ge_u32 s2, 256")
    A("s_cbranch_scc1 Lend")
    A("s_load_dwordx16 s[4:19], s[0:1], 0")
    A("s_load_dwordx4 s[20:23], s[0:1], 64")
    mark("start", False)
    A("v_lshrrev_b32 v1, 6, v0")
    A("v_readfirstlane_b32 s3, v1")
    A("v_and_b32 v1, 63, v0")
    A("v_lshlrev_b32 v2, 4, v1")
    A("v_and_b32 v3, 31, v1")
    A("v_lshrrev_b32 v4, 5, v1")
    A("v_and_b32 v5, 0xfffffff3, v3"); A("v_and_b32 v6, 4, v3"); A("v_lshl_or_b32 v5, v6, 1, v5")
    A("v_and_b32 v6, 8, v3"); A("v_lshrrev_b32 v6, 1, v6"); A("v_or_b32 v5, v5, v6")
    p1()
    mark("gb_done")
    mark("pre1")
    wait_global(1)
    mark("go1")
    def chk7():
        roles()
        A("s_lshl_b32 s57, s52, 1"); A("s_lshr_b32 s56, s3, 1"); A("s_add_u32 s57, s57, s56"); A("s_lshl_b32 s57, s57, 8")
        A(f"s_add_u32 s64, s57, 0x{sync_off(7):x}")
        A("v_mov_b32 v41, 0")
        vm.issue(f"buffer_load_dword v40, v41, {WS}, s64 offen sc1", "c7")
    fft(0, p1_gc, [], chk7)
    mark("fft0_done")
    arrive_global(2)
    mark("arr2")
    lsk = newlab("sk"); lok = newlab("ok")
    A("s_cmp_ge_u32 s52, 14"); A(f"s_cbranch_scc1 {lsk}")
    A("v_cmp_gt_u32 vcc, 8, v40"); A(f"s_cbranch_vccz {lok}")
    poll(WS, "v41", "s64", 1, 8)
    A("s_mov_b64 exec, -1")
    A.label(lok)
    a_base()
    for c in range(NPRE0): a_loads(c, A, lambda t, tag: A(t))
    A.label(lsk)
    gemm1_pre(0)
    mark("pre2")
    wait_global(2)
    mark("go2")
    vm.q = [("a", c) for c in range(NPRE0) for _ in range(8)]
    gemm1(0, NPRE0)
    gemm2_pre(0)
    gemm2_static(0)
    mark("pre3")
    wait_local(3, "s68", 14)
    mark("go3")
    gemm2(0)
    mark("g2a_done")
    arrive_global(4)
    mark("arr4")
    a_base()
    with Drip(sum([splitl(a_loads, c) for c in range(NB4)], []), 6):
        fft_tables()
        fft_unpack_static()
    mark("pre4")
    wait_global(4)
    mark("go4")
    fft(1)
    mark("fft1_done")
    arrive_global(5)
    mark("arr5")
    for c in range(NB4, 8): a_loads(c, A, vm.issue)
    gemm1_pre(1)
    mark("pre5")
    wait_global(5)
    mark("go5")
    gemm1(1, 8)
    gemm2_pre(1)
    gemm2_static(1)
    mark("pre6")
    wait_local(6, "s68", 16)
    mark("go6")
    gemm2(1)
    if TRACE:
        A("s_waitcnt vmcnt(0) lgkmcnt(0)")
        A("s_memrealtime s[56:57]")
        A("s_waitcnt lgkmcnt(0)")
        A("s_lshl_b32 s58, s2, 2"); A("s_add_u32 s58, s58, s3"); A("s_lshl_b32 s58, s58, 7"); A(f"s_add_u32 s58, s58, 0x{TRBASE:x}")
        A("v_mov_b32 v0, 0")
        for i in range(16):
            A(f"v_mov_b32 v1, s{70+2*i}")
            A(f"buffer_store_dword v1, v0, {WS}, s58 offen offset:{4*i}")
        A("v_mov_b32 v1, s56")
        A(f"buffer_store_dword v1, v0, {WS}, s58 offen offset:64")
    A.label("Lend")
    A("s_endpgm")
    if TRACE: open(path + ".names", "w").write(" ".join(SEL))
    hdr = f"; @launch grid=(256,1,1) block=(256,1,1) lds={LDS_TOTAL}\n"
    open(path, "w").write(hdr + HDR + A.text() + '.section .rodata,"a"\n' + kd(KN, 512, accum=256))

if __name__ == "__main__":
    main(sys.argv[1])
```
